```python
import torch

def _softmax(x, axis=-1):
    return torch.softmax(x, dim=axis)
def _gelu(x):
    return torch.nn.functional.gelu(x, approximate="tanh")
def _silu(x):
    return torch.nn.functional.silu(x)
def _sigmoid(x):
    return torch.sigmoid(x)
def _layernorm(x, axis=-1, eps=1e-5):
    m = x.mean(dim=axis, keepdim=True)
    v = x.var(dim=axis, keepdim=True, unbiased=False)
    return (x - m) / torch.sqrt(v + eps)
def _scatter_add(tgt, idx, src, axis=0):
    return tgt.clone().index_add_(axis, idx, src)
def _segment_sum(src, seg, n):
    out = torch.zeros((n,) + src.shape[1:], dtype=src.dtype)
    return out.index_add_(0, seg, src)
def _pad(x, pw):
    flat = tuple(v for pair in reversed(pw) for v in pair)
    return torch.nn.functional.pad(x, flat)

kernel_name = 'standalone__gqa_block_cached__decode'

def setup_inputs():

    _w = (lambda a: (lambda t: t.to(torch.bfloat16) if t.is_floating_point() else t)(torch.as_tensor(a)))
    B, Sq, D = 4, 1, 512
    Hq, Hkv, Sk, Dh = 32, 8, 16384, 128
    assert Hq % Hkv == 0, (Hq, Hkv)
    return {
        "x": _w((lambda *s: torch.randn(*s, dtype=torch.bfloat16) * 0.8)(B, Sq, D)),
        "k_cache": _w((lambda *s: torch.randn(*s, dtype=torch.bfloat16) * 0.8)(B, Hkv, Sk, Dh)),
        "v_cache": _w((lambda *s: torch.randn(*s, dtype=torch.bfloat16) * 0.05)(B, Hkv, Sk, Dh)),
        "wq": _w((lambda *s: torch.randn(*s, dtype=torch.bfloat16) * 0.8)(D, Hq * Dh) * (D ** -0.5)),
        "wo": _w((lambda *s: torch.randn(*s, dtype=torch.bfloat16) * 0.05)(Hq * Dh, D) * ((Hq * Dh) ** -0.5)),
    }

def reference(x, k_cache, v_cache, wq, wo):
    B, Sq, D = x.shape
    Hq, Dh = 32, 128
    Hkv = k_cache.shape[1]
    rep = Hq // Hkv
    q = (lambda x, *d: x.permute(*d))((x @ wq).reshape(B, Sq, Hq, Dh), 0, 2, 1, 3)
    k = (lambda x, n, axis: torch.repeat_interleave(x, n, dim=axis))(k_cache, rep, axis=1)
    v = (lambda x, n, axis: torch.repeat_interleave(x, n, dim=axis))(v_cache, rep, axis=1)
    scores = torch.einsum("bhqd,bhkd->bhqk", q, k) * (Dh ** -0.5)
    p = _softmax(scores, axis=-1)
    o = torch.einsum("bhqk,bhkd->bhqd", p, v)
    return (lambda x, *d: x.permute(*d))(o, 0, 2, 1, 3).reshape(B, Sq, Hq * Dh) @ wo
```

```python
import sys, math

NAME = "standalone__gqa_block_cached__decode_kernel"
HEADER = """; Kernarg layout for this problem (64 bytes, ptrs only, base s[0:1]):
;
"""

WS_Q, WS_P1, WS_ML, WS_P2, WS_STAMP = 0x0, 0x10000, 0x50000, 0x60000, 0x200000
LDS_W, LDS_X, LDS_Q, LDS_O, LDS_ML, LDS_SIZE = 0, 16384, 20480, 21504, 29696, 29824
SPIN_MAX = 40000


class Gen:
    def __init__(self, D=6, W=8, pol="nt", stamps=False, wpol="nt"):
        self.D, self.W, self.pol, self.stamps, self.wpol = D, W, pol, stamps, wpol
        self.L = []

    def A(self, s):
        for line in s.strip("\n").split("\n"):
            line = line.strip()
            if not line:
                continue
            self.L.append(line if line.endswith(":") or line.startswith(".") else "    " + line)

    def stamp(self, idx):
        if self.stamps:
            self.A(f"s_memrealtime s[{60+2*idx}:{61+2*idx}]")

    def stamp_out(self, n):
        if not self.stamps:
            return
        A = self.A
        A("s_waitcnt lgkmcnt(0)")
        A("s_mov_b64 exec, 1")
        A(f"s_mul_i32 s58, s2, 5\ns_add_u32 s58, s58, s20\ns_lshl_b32 s58, s58, 6\ns_add_u32 s58, s58, {WS_STAMP}")
        A("v_mov_b32 v1, s58")
        for i in range(n):
            A(f"v_mov_b32 v2, s{60+2*i}\nglobal_store_dword v1, v2, s[18:19] offset:{4*i}")
        A("s_getreg_b32 s58, hwreg(HW_REG_XCC_ID)\nv_mov_b32 v2, s58\nglobal_store_dword v1, v2, s[18:19] offset:60")

    def streamer(self):
        A, D, W, pol = self.A, self.D, self.W, self.pol
        vOK, vOV, vMA, vMB = 2, 3, 4, 5
        vQ = 8
        vO = 12
        vM, vL, vMX, vT, vAL, vAO = 20, 21, 22, 23, 24, 25
        vD = 28
        vS = 44
        vP = 48
        RING = 56
        self.nv_stream = RING + 32 * D

        def kreg(j, c): return RING + 32 * j + 4 * c
        def vreg(j, c): return RING + 32 * j + 16 + 4 * c
        def ldk(j, c): A(f"buffer_load_dwordx4 v[{kreg(j,c)}:{kreg(j,c)+3}], v{vOK}, s[24:27], s33 offen offset:{c*1024} {pol}")
        def ldv(j, c): A(f"buffer_load_dwordx4 v[{vreg(j,c)}:{vreg(j,c)+3}], v{vOV}, s[28:31], s33 offen offset:{c*1024} {pol}")

        A(f"""
        v_and_b32 v6, 3, v1
        v_lshlrev_b32 v{vOK}, 4, v6
        v_bfe_u32 v7, v1, 2, 2
        v_lshl_add_u32 v{vOK}, v7, 8, v{vOK}
        v_lshrrev_b32 v7, 4, v1
        v_lshl_add_u32 v{vOK}, v7, 6, v{vOK}
        v_lshlrev_b32 v{vOV}, 4, v1
        s_lshl_b32 s34, s22, 2
        s_add_u32 s34, s34, s20
        s_sub_u32 s34, s34, 1
        s_lshl_b32 s33, s34, 12
        s_lshl_b32 s35, s21, 22
        s_mov_b32 s26, 0x400000
        s_mov_b32 s27, 0x20000
        s_mov_b32 s30, 0x400000
        s_mov_b32 s31, 0x20000
        s_waitcnt lgkmcnt(0)
        s_add_u32 s24, s6, s35
        s_addc_u32 s25, s7, 0
        s_add_u32 s28, s8, s35
        s_addc_u32 s29, s9, 0
        """)
        n = 0
        for j in range(D):
            for t in range(2):
                for c in range(4):
                    if n >= W: A(f"s_waitcnt vmcnt({W-1})")
                    (ldk if t == 0 else ldv)(j, c)
                    n += 1
                    if n == W:
                        A(f"""
                        v_mov_b32 v7, 0xffff
                        v_mov_b32 v{vT}, 0xffff0000
                        v_cmp_eq_u32 vcc, 0, v6
                        v_cmp_eq_u32 s[36:37], 1, v6
                        v_cmp_eq_u32 s[38:39], 2, v6
                        v_cmp_eq_u32 s[40:41], 3, v6
                        v_cndmask_b32 v{vMA}, 0, v7, vcc
                        v_cndmask_b32 v{vMA}, v{vMA}, v{vT}, s[36:37]
                        v_cndmask_b32 v{vMB}, 0, v7, s[38:39]
                        v_cndmask_b32 v{vMB}, v{vMB}, v{vT}, s[40:41]
                        v_mov_b32 v{vM}, 0xff7fffff
                        v_mov_b32 v{vL}, 0
                        """)
                        for r in range(8): A(f"v_mov_b32 v{vO+r}, 0")
                        c_scale = math.log2(math.e) / math.sqrt(128.0)
                        import struct
                        bits = struct.unpack("<I", struct.pack("<f", c_scale))[0]
                        A(f"s_mov_b32 s42, {bits:#x}")
                        A("s_mov_b32 s43, 32")
            A("s_add_u32 s33, s33, 0x20000")
        self.stamp(1)
        A("s_barrier")
        A(f"ds_read_b128 v[{vQ}:{vQ+3}], v{vOV} offset:{LDS_Q}")
        A("s_waitcnt lgkmcnt(0)")
        self.stamp(2)
        A("L_loop:")
        for j in range(D):
            A(f"; --- stage {j}")
            A(f"s_cmp_lt_u32 s33, 0x400000")
            A(f"s_waitcnt vmcnt({8*D-4})")
            for c in range(4):
                A(f"v_mfma_f32_16x16x32_bf16 v[{vD+4*c}:{vD+4*c+3}], v[{kreg(j,c)}:{kreg(j,c)+3}], v[{vQ}:{vQ+3}], 0")
            A("s_cselect_b32 s26, 0x400000, 0")
            A("s_cselect_b32 s30, 0x400000, 0")
            for c in range(4): ldk(j, c)
            A("s_nop 1")
            for c in range(4):
                A(f"v_mov_b32_dpp v{vS+c}, v{vD+4*c} quad_perm:[0,0,0,0] row_mask:0xf bank_mask:0xf")
            for r in range(1, 4):
                for c in range(4):
                    A(f"v_add_f32_dpp v{vS+c}, v{vD+4*c+r}, v{vS+c} quad_perm:[{r},{r},{r},{r}] row_mask:0xf bank_mask:0xf")
            A(f"""
            v_max3_f32 v{vMX}, v{vS}, v{vS+1}, v{vS+2}
            v_max_f32 v{vMX}, v{vMX}, v{vS+3}
            v_mul_f32 v{vMX}, s42, v{vMX}
            v_cmp_gt_f32 vcc, v{vMX}, v{vM}
            s_cbranch_vccz L_keep{j}
            s_call_b64 s[44:45], L_rescale
            L_keep{j}:
            """)
            for c in range(4): A(f"v_fma_f32 v{vS+c}, v{vS+c}, s42, -v{vM}")
            for c in range(4): A(f"v_exp_f32 v{vS+c}, v{vS+c}")
            for c in range(4):
                A(f"v_cvt_pk_bf16_f32 v{vP+2*c+1}, v{vS+c}, v{vS+c}")
            A(f"v_add_f32 v{vS}, v{vS}, v{vS+1}")
            A(f"v_add_f32 v{vS+2}, v{vS+2}, v{vS+3}")
            for c in range(4):
                A(f"v_and_b32 v{vP+2*c}, v{vP+2*c+1}, v{vMA}")
                A(f"v_and_b32 v{vP+2*c+1}, v{vP+2*c+1}, v{vMB}")
            A(f"v_add_f32 v{vL}, v{vL}, v{vS}")
            A(f"v_add_f32 v{vL}, v{vL}, v{vS+2}")
            A(f"s_sub_u32 s43, s43, 1")
            A(f"s_waitcnt vmcnt({8*D-4})")
            for c in range(4):
                A(f"v_mfma_f32_16x16x16_bf16 v[{vO}:{vO+3}], v[{vP+2*c}:{vP+2*c+1}], v[{vreg(j,c)}:{vreg(j,c)+1}], v[{vO}:{vO+3}]")
                A(f"v_mfma_f32_16x16x16_bf16 v[{vO+4}:{vO+7}], v[{vP+2*c}:{vP+2*c+1}], v[{vreg(j,c)+2}:{vreg(j,c)+3}], v[{vO+4}:{vO+7}]")
            A("s_cmp_eq_u32 s43, 0")
            A("s_cbranch_scc1 L_done")
            for c in range(4): ldv(j, c)
            A("s_add_u32 s33, s33, 0x20000")
        A("s_branch L_loop")
        A(f"""
        L_rescale:
        v_mov_b32 v{vT}, v{vMX}
        s_nop 1
        v_permlane16_swap_b32 v{vMX}, v{vT}
        s_nop 1
        v_max_f32 v{vMX}, v{vMX}, v{vT}
        v_mov_b32 v{vT}, v{vMX}
        s_nop 1
        v_permlane32_swap_b32 v{vMX}, v{vT}
        s_nop 1
        v_max3_f32 v{vMX}, v{vMX}, v{vT}, v{vM}
        v_sub_f32 v{vAL}, v{vM}, v{vMX}
        v_exp_f32 v{vAL}, v{vAL}
        v_mov_b32 v{vM}, v{vMX}
        v_mul_f32 v{vL}, v{vL}, v{vAL}
        s_nop 0
        """)
        for g in range(4):
            A(f"v_mov_b32_dpp v{vAO}, v{vAL} row_newbcast:{4*g} row_mask:{1<<g:#x} bank_mask:0xf")
            A("s_nop 1")
        for r in range(8): A(f"v_mul_f32 v{vO+r}, v{vO+r}, v{vAO}")
        A("s_setpc_b64 s[44:45]")

        A("L_done:")
        self.stamp(3)
        A(f"""
        v_mov_b32 v{vT}, v{vL}
        s_sub_u32 s34, s20, 1
        s_lshl_b32 s35, s34, 11
        v_permlane16_swap_b32 v{vL}, v{vT}
        v_lshrrev_b32 v6, 4, v1
        v_and_b32 v7, 15, v1
        v_add_f32 v{vL}, v{vL}, v{vT}
        v_mov_b32 v{vT}, v{vL}
        v_lshlrev_b32 v6, 9, v6
        v_lshl_add_u32 v6, v7, 5, v6
        v_permlane32_swap_b32 v{vL}, v{vT}
        v_add_u32 v6, s35, v6
        s_lshl_b32 s35, s34, 2
        v_add_f32 v{vL}, v{vL}, v{vT}
        v_lshl_add_u32 v7, v1, 2, s35
        ds_write_b128 v6, v[{vO}:{vO+3}] offset:{LDS_O}
        ds_write_b128 v6, v[{vO+4}:{vO+7}] offset:{LDS_O+16}
        s_mov_b64 exec, 0x1111
        ds_write_b32 v7, v{vM} offset:{LDS_ML}
        ds_write_b32 v7, v{vL} offset:{LDS_ML+64}
        s_mov_b64 exec, -1
        s_lshl_b32 s35, s34, 9
        v_lshl_add_u32 v6, v1, 3, s35
        s_lshl_b32 s35, s34, 4
        v_mov_b32 v7, s35
        s_waitcnt lgkmcnt(0)
        s_barrier
        ds_read_b128 v[28:31], v7 offset:{LDS_ML}
        ds_read_b128 v[32:35], v7 offset:{LDS_ML+64}
        ds_read_b64 v[36:37], v6 offset:{LDS_O}
        ds_read_b64 v[38:39], v6 offset:{LDS_O+2048}
        ds_read_b64 v[40:41], v6 offset:{LDS_O+4096}
        ds_read_b64 v[42:43], v6 offset:{LDS_O+6144}
        s_lshl_b32 s35, s2, 10
        s_lshl_b32 s36, s34, 8
        s_add_u32 s35, s35, s36
        s_add_u32 s35, s35, {WS_P1}
        v_lshl_add_u32 v6, v1, 2, s35
        s_lshl_b32 s35, s21, 2
        s_add_u32 s35, s35, s34
        s_lshl_b32 s35, s35, 3
        s_add_u32 s35, s35, s22
        s_lshl_b32 s35, s35, 3
        s_add_u32 s35, s35, {WS_ML}
        v_mov_b32 v7, s35
        s_waitcnt lgkmcnt(5)
        v_max3_f32 v44, v28, v29, v30
        v_max_f32 v44, v44, v31
        v_sub_f32 v28, v28, v44
        v_sub_f32 v29, v29, v44
        v_sub_f32 v30, v30, v44
        v_sub_f32 v31, v31, v44
        v_exp_f32 v28, v28
        v_exp_f32 v29, v29
        v_exp_f32 v30, v30
        v_exp_f32 v31, v31
        s_waitcnt lgkmcnt(0)
        v_mul_f32 v46, v28, v36
        v_mul_f32 v47, v28, v37
        v_mul_f32 v45, v28, v32
        v_fmac_f32 v46, v29, v38
        v_fmac_f32 v47, v29, v39
        v_fmac_f32 v45, v29, v33
        v_fmac_f32 v46, v30, v40
        v_fmac_f32 v47, v30, v41
        v_fmac_f32 v45, v30, v34
        v_fmac_f32 v46, v31, v42
        v_fmac_f32 v47, v31, v43
        v_fmac_f32 v45, v31, v35
        v_cvt_pk_bf16_f32 v48, v46, v47
        v_min_u32 v44, -2, v44
        v_min_u32 v48, -2, v48
        v_min_u32 v45, -2, v45
        s_nop 0
        v_mov_b32_dpp v49, v48 quad_perm:[1,1,1,1] row_mask:0xf bank_mask:0xf
        v_mov_b32_dpp v50, v48 quad_perm:[2,2,2,2] row_mask:0xf bank_mask:0xf
        v_mov_b32_dpp v51, v48 quad_perm:[3,3,3,3] row_mask:0xf bank_mask:0xf
        s_mov_b32 exec_lo, 0x11111111
        s_mov_b32 exec_hi, 0x11111111
        global_store_dwordx4 v6, v[48:51], s[18:19] sc1
        s_mov_b64 exec, 1
        global_store_dwordx2 v7, v[44:45], s[18:19] sc1
        """)
        self.stamp(4)
        self.stamp_out(5)
        A("s_endpgm")

    def helper(self):
        A, wpol = self.A, self.wpol
        A("L_helper:")
        A(f"""
        s_setprio 3
        v_lshrrev_b32 v2, 1, v1
        v_lshlrev_b32 v2, 13, v2
        v_and_b32 v3, 1, v1
        v_lshl_add_u32 v2, v3, 4, v2
        v_lshlrev_b32 v3, 4, v1
        s_lshl_b32 s23, s22, 5
        s_add_u32 s23, s23, s21
        s_lshl_b32 s34, s23, 5
        s_mov_b32 s27, 0x20000
        s_sub_u32 s26, 0x400000, s34
        s_mov_b32 s30, 0x1000
        s_mov_b32 s31, 0x20000
        s_mov_b32 m0, {LDS_X}
        s_waitcnt lgkmcnt(0)
        s_add_u32 s24, s10, s34
        s_addc_u32 s25, s11, 0
        s_mov_b32 s28, s4
        s_mov_b32 s29, s5
        """)
        for i in range(4):
            A(f"buffer_load_dwordx4 v3, s[28:31], 0 offen offset:{i*1024} lds")
        for i in range(16):
            A(f"s_mov_b32 m0, {LDS_W + i*1024}")
            A(f"s_mov_b32 s33, {i*32*8192}")
            A(f"buffer_load_dwordx4 v2, s[24:27], s33 offen {wpol} lds")
        A(f"""
        s_getpc_b64 s[36:37]
        L_pc:
        s_sub_u32 s36, s36, L_pc-{NAME}
        s_subb_u32 s37, s37, 0
        v_lshlrev_b32 v4, 7, v1
        v_min_u32 v4, L_code_end-{NAME}-4, v4
        global_load_dword v5, v4, s[36:37]
        v_mov_b32 v8, -1
        v_mov_b32 v9, -1
        v_mov_b32 v10, -1
        v_mov_b32 v11, -1
        s_lshl_b32 s35, s2, 10
        s_add_u32 s35, s35, {WS_P1}
        v_add_u32 v6, s35, v3
        global_store_dwordx4 v6, v[8:11], s[18:19] sc1
        s_and_b32 s38, s21, 3
        s_lshl_b32 s39, s22, 2
        s_add_u32 s38, s38, s39
        s_lshr_b32 s39, s21, 2
        s_lshl_b32 s35, s38, 3
        s_add_u32 s35, s35, s39
        s_lshl_b32 s35, s35, 10
        s_add_u32 s35, s35, {WS_P2}
        v_add_u32 v12, s35, v3
        global_store_dwordx4 v12, v[8:11], s[18:19] sc1
        s_lshl_b32 s35, s21, 8
        s_lshl_b32 s40, s22, 3
        s_add_u32 s35, s35, s40
        s_add_u32 s35, s35, {WS_ML}
        v_lshl_add_u32 v6, v1, 6, s35
        s_mov_b64 exec, 15
        global_store_dwordx2 v6, v[8:9], s[18:19] sc1
        s_mov_b64 exec, -1
        """)
        A(f"""
        v_lshrrev_b32 v6, 4, v1
        v_and_b32 v7, 15, v1
        v_lshlrev_b32 v13, 8, v6
        v_lshl_add_u32 v13, v7, 3, v13
        v_and_b32 v14, 3, v1
        v_lshlrev_b32 v14, 10, v14
        v_lshl_add_u32 v14, v6, 4, v14
        s_waitcnt vmcnt(4)
        """)
        self.stamp(1)
        WR, XR = 32, 96
        def rd(t):
            A(f"ds_read_b64_tr_b16 v[{WR+4*t}:{WR+4*t+1}], v13 offset:{LDS_W + t*1024}")
            A(f"ds_read_b64_tr_b16 v[{WR+4*t+2}:{WR+4*t+3}], v13 offset:{LDS_W + t*1024 + 128}")
            A(f"ds_read_b128 v[{XR+4*t}:{XR+4*t+3}], v14 offset:{LDS_X + t*64}")
        for t in range(4): rd(t)
        for t in range(16):
            rem = min(3, 15 - t)
            A(f"s_waitcnt lgkmcnt({3*rem})")
            src = "0" if t == 0 else "v[16:19]"
            A(f"v_mfma_f32_16x16x32_bf16 v[16:19], v[{WR+4*t}:{WR+4*t+3}], v[{XR+4*t}:{XR+4*t+3}], {src}")
            if t + 4 < 16: rd(t + 4)
        A(f"""
        v_and_b32 v15, 3, v1
        v_lshlrev_b32 v15, 13, v15
        v_lshl_add_u32 v15, v6, 3, v15
        v_add_u32 v15, s34, v15
        s_and_b32 s40, s21, 7
        s_lshl_b32 s41, s40, 5
        s_lshl_b32 s35, s22, 5
        s_add_u32 s46, s16, s35
        s_addc_u32 s47, s17, 0
        v_cvt_pk_bf16_f32 v20, v16, v17
        v_cvt_pk_bf16_f32 v21, v18, v19
        s_mov_b32 exec_lo, 0x000f000f
        s_mov_b32 exec_hi, 0x000f000f
        global_store_dwordx2 v15, v[20:21], s[18:19] sc1
        s_mov_b64 exec, -1
        v_mov_b32 v22, s41
        s_mov_b32 s48, 1
        s_mov_b32 s49, 0
        s_lshr_b32 s35, s21, 3
        s_lshl_b32 s35, s35, 13
        s_lshl_b32 s41, s40, 10
        s_add_u32 s35, s35, s41
        v_and_b32 v23, 3, v1
        v_lshlrev_b32 v23, 4, v23
        v_bfe_u32 v24, v1, 2, 2
        v_lshl_add_u32 v23, v24, 8, v23
        v_lshl_add_u32 v23, v6, 6, v23
        v_add_u32 v23, s35, v23
        s_waitcnt vmcnt(0)
        """)
        self.stamp(2)
        A(f"""
        s_atomic_add s48, s[46:47], 0x0
        s_mov_b64 exec, 1
        L_pollq:
        global_load_dword v24, v22, s[16:17] sc1
        s_add_u32 s49, s49, 1
        s_waitcnt vmcnt(0)
        v_readfirstlane_b32 s50, v24
        s_cmp_ge_u32 s50, 32
        s_cbranch_scc1 L_gotq
        s_cmp_lt_u32 s49, {SPIN_MAX}
        s_cbranch_scc1 L_pollq
        L_gotq:
        s_mov_b64 exec, -1
        """)
        self.stamp(3)
        A(f"""
        global_load_dwordx4 v[24:27], v23, s[18:19] sc1
        s_lshl_b32 s35, s38, 17
        s_lshl_b32 s41, s39, 7
        s_add_u32 s35, s35, s41
        s_add_u32 s24, s12, s35
        s_addc_u32 s25, s13, 0
        s_sub_u32 s26, 0x400000, s35
        v_lshrrev_b32 v2, 3, v1
        v_lshlrev_b32 v2, 10, v2
        v_and_b32 v4, 7, v1
        v_lshl_add_u32 v2, v4, 4, v2
        s_waitcnt vmcnt(0)
        ds_write_b128 v3, v[24:27] offset:{LDS_Q}
        s_waitcnt lgkmcnt(0)
        s_barrier
        """)
        self.stamp(4)
        for i in range(16):
            A(f"s_mov_b32 m0, {LDS_W + i*1024}")
            A(f"s_mov_b32 s33, {i*8*1024}")
            A(f"buffer_load_dwordx4 v2, s[24:27], s33 offen {wpol} lds")
        A(f"""
        v_lshlrev_b32 v22, 5, v1
        s_mov_b32 s49, 0
        s_mov_b64 exec, 0xff
        L_pollall:
        global_load_dword v24, v22, s[16:17] sc1
        s_add_u32 s49, s49, 1
        s_waitcnt vmcnt(0)
        v_cmp_gt_u32 vcc, 32, v24
        s_cbranch_vccz L_gotall
        s_cmp_lt_u32 s49, {SPIN_MAX}
        s_cbranch_scc1 L_pollall
        L_gotall:
        s_mov_b64 exec, -1
        v_lshrrev_b32 v13, 2, v7
        v_lshl_add_u32 v13, v6, 3, v13
        v_lshlrev_b32 v13, 7, v13
        v_and_b32 v4, 3, v1
        v_lshl_add_u32 v13, v4, 3, v13
        """)
        BR = 32
        cnt = 0
        for t in range(4):
            for nt in range(4):
                r = BR + 16 * t + 4 * nt
                A(f"ds_read_b64_tr_b16 v[{r}:{r+1}], v13 offset:{LDS_W + t*4096 + nt*32}")
                A(f"ds_read_b64_tr_b16 v[{r+2}:{r+3}], v13 offset:{LDS_W + t*4096 + nt*32 + 512}")
            A("s_waitcnt lgkmcnt(0)")
        AR = 96
        A(f"""
        s_lshr_b32 s40, s38, 2
        s_and_b32 s41, s38, 3
        v_lshrrev_b32 v15, 2, v7
        v_lshlrev_b32 v15, 16, v15
        v_lshl_add_u32 v15, v4, 10, v15
        v_lshl_add_u32 v15, v6, 4, v15
        s_lshl_b32 s35, s40, 13
        s_lshl_b32 s50, s41, 8
        s_add_u32 s35, s35, s50
        s_add_u32 s35, s35, {WS_P1}
        v_add_u32 v15, s35, v15
        v_add_u32 v16, 0x1000, v15
        v_and_b32 v17, 7, v1
        v_lshlrev_b32 v17, 3, v17
        v_lshl_add_u32 v17, v6, 11, v17
        s_lshl_b32 s35, s38, 6
        s_add_u32 s35, s35, {WS_ML}
        v_add_u32 v17, s35, v17
        v_lshrrev_b32 v18, 1, v1
        v_lshlrev_b32 v18, 13, v18
        v_and_b32 v19, 1, v1
        v_lshl_add_u32 v18, v19, 4, v18
        s_lshl_b32 s35, s22, 10
        s_lshl_b32 s50, s21, 5
        s_add_u32 s35, s35, s50
        s_add_u32 s35, s35, {WS_P2}
        v_add_u32 v18, s35, v18
        v_and_b32 v19, 1, v6
        v_lshlrev_b32 v19, 6, v19
        v_lshrrev_b32 v20, 1, v6
        v_lshl_add_u32 v19, v20, 5, v19
        s_lshr_b32 s35, s21, 3
        s_lshl_b32 s35, s35, 10
        s_lshl_b32 s50, s22, 7
        s_add_u32 s35, s35, s50
        s_and_b32 s50, s21, 7
        s_lshl_b32 s50, s50, 2
        s_add_u32 s35, s35, s50
        v_add_u32 v19, s35, v19
        s_mov_b32 s49, 0
        s_barrier
        """)
        self.stamp(5)
        A("L_poll1:")
        A("global_load_dwordx2 v[20:21], v17, s[18:19] sc1")
        for u in range(2):
            for t in range(4):
                r = AR + 16 * u + 4 * t
                A(f"global_load_dwordx4 v[{r}:{r+3}], v{15+u}, s[18:19] offset:{64*t} sc1")
        A("s_add_u32 s49, s49, 1")
        A("s_waitcnt vmcnt(8)")
        A("v_max_u32 v22, v20, v21")
        for k in range(8):
            r = AR + 4 * k
            A(f"s_waitcnt vmcnt({7-k})")
            A(f"v_max3_u32 v22, v22, v{r}, v{r+1}")
            A(f"v_max3_u32 v22, v22, v{r+2}, v{r+3}")
        A(f"""
        v_cmp_eq_u32 vcc, -1, v22
        s_cmp_ge_u32 s49, {SPIN_MAX}
        s_cbranch_scc1 L_got1
        s_and_b64 exec, exec, vcc
        s_cbranch_scc1 L_poll1
        L_got1:
        s_mov_b64 exec, -1
        """)
        self.stamp(6)
        CR = 128
        wl = [
            "v_max_f32_dpp v22, v20, v20 row_ror:1 row_mask:0xf bank_mask:0xf",
            "v_max_f32_dpp v22, v22, v22 row_ror:2 row_mask:0xf bank_mask:0xf",
            "v_max_f32_dpp v22, v22, v22 row_ror:4 row_mask:0xf bank_mask:0xf",
            "v_sub_f32 v22, v20, v22",
            "v_exp_f32 v22, v22",
            "v_mul_f32 v23, v22, v21",
            "v_add_f32_dpp v23, v23, v23 row_ror:1 row_mask:0xf bank_mask:0xf",
            "v_add_f32_dpp v23, v23, v23 row_ror:2 row_mask:0xf bank_mask:0xf",
            "v_add_f32_dpp v23, v23, v23 row_ror:4 row_mask:0xf bank_mask:0xf",
            "v_rcp_f32 v23, v23",
            "v_mul_f32 v22, v22, v23",
        ]
        k = 0
        for t in range(4):
            for u in range(2):
                for nt in range(4):
                    a, b, c = AR + 16 * u + 4 * t, BR + 16 * t + 4 * nt, CR + 16 * u + 4 * nt
                    src = "0" if t == 0 else f"v[{c}:{c+3}]"
                    A(f"v_mfma_f32_16x16x32_bf16 v[{c}:{c+3}], v[{a}:{a+3}], v[{b}:{b+3}], {src}")
                    k += 1
                    if k % 2 == 0 and wl: A(wl.pop(0))
        assert not wl
        A("s_nop 4")
        for u in range(2):
            for r in range(4):
                for nt in range(4):
                    c = CR + 16 * u + 4 * nt + r
                    op = "v_mul_f32_dpp" if (u == 0 and r == 0) else "v_fmac_f32_dpp"
                    A(f"{op} v{24+nt}, v22, v{c} row_newbcast:{4*u+r} row_mask:0xf bank_mask:0xf")
        for nt in range(4): A(f"v_min_u32 v{24+nt}, -2, v{24+nt}")
        A(f"""
        global_store_dwordx4 v12, v[24:27], s[18:19] sc1
        s_mov_b32 s49, 0
        """)
        self.stamp(7)
        A(f"""
        L_poll2:
        global_load_dwordx4 v[28:31], v18, s[18:19] sc1
        s_add_u32 s49, s49, 1
        s_waitcnt vmcnt(0)
        v_max3_u32 v22, v28, v29, v30
        v_max_u32 v22, v22, v31
        v_cmp_eq_u32 vcc, -1, v22
        s_cmp_ge_u32 s49, {SPIN_MAX}
        s_cbranch_scc1 L_got2
        s_and_b64 exec, exec, vcc
        s_cbranch_scc1 L_poll2
        L_got2:
        s_mov_b64 exec, -1
        """)
        self.stamp(8)
        A(f"""
        v_permlane32_swap_b32 v28, v29
        v_permlane32_swap_b32 v30, v31
        s_nop 1
        v_add_f32 v28, v28, v29
        v_add_f32 v30, v30, v31
        s_nop 1
        v_permlane16_swap_b32 v28, v30
        s_nop 1
        v_add_f32 v28, v28, v30
        s_nop 1
        v_add_f32_dpp v28, v28, v28 row_ror:2 row_mask:0xf bank_mask:0xf
        s_nop 1
        v_add_f32_dpp v28, v28, v28 row_ror:4 row_mask:0xf bank_mask:0xf
        s_nop 1
        v_add_f32_dpp v28, v28, v28 row_ror:8 row_mask:0xf bank_mask:0xf
        s_nop 1
        v_mov_b32_dpp v29, v28 quad_perm:[1,1,1,1] row_mask:0xf bank_mask:0xf
        s_mov_b32 exec_lo, 0x00010001
        s_mov_b32 exec_hi, 0x00010001
        v_cvt_pk_bf16_f32 v28, v28, v29
        global_store_dword v19, v28, s[14:15]
        """)
        self.stamp(9)
        self.stamp_out(10)
        A("L_end:")
        A("s_endpgm")

    def build(self):
        A = self.A
        self.L.append(HEADER.rstrip("\n"))
        self.L.append(f"; @launch grid=(256,1,1) block=(320,1,1) lds={LDS_SIZE}")
        A('.amdgcn_target "amdgcn-amd-amdhsa--gfx950"')
        A(".text")
        A(f".globl {NAME}\n.p2align 8\n.type {NAME},@function\n{NAME}:")
        A("""
        s_cmp_ge_u32 s2, 256
        s_cbranch_scc1 L_end
        s_load_dwordx16 s[4:19], s[0:1], 0
        """)
        self.stamp(0)
        A("""
        v_lshrrev_b32 v2, 6, v0
        v_and_b32 v1, 63, v0
        s_lshr_b32 s21, s2, 3
        v_readfirstlane_b32 s20, v2
        s_and_b32 s22, s2, 7
        s_cmp_eq_u32 s20, 0
        s_cbranch_scc1 L_helper
        """)
        self.streamer()
        self.helper()
        A("L_code_end:")
        nv = max(self.nv_stream, 160)
        A(f""".section .rodata,"a"
.p2align 6
.amdhsa_kernel {NAME}
  .amdhsa_next_free_vgpr {nv}
  .amdhsa_next_free_sgpr 96
  .amdhsa_accum_offset {(nv + 3) // 4 * 4}
  .amdhsa_group_segment_fixed_size 0
  .amdhsa_kernarg_size 64
  .amdhsa_user_sgpr_count 2
  .amdhsa_user_sgpr_kernarg_segment_ptr 1
  .amdhsa_system_sgpr_workgroup_id_x 1
  .amdhsa_float_denorm_mode_32 3
.end_amdhsa_kernel""")
        return "\n".join(self.L) + "\n"


if __name__ == "__main__":
    out = sys.argv[1] if len(sys.argv) > 1 else "standalone__gqa_block_cached__decode.s"
    kw = eval("dict(" + (sys.argv[2] if len(sys.argv) > 2 else "") + ")")
    open(out, "w").write(Gen(**kw).build())
```

```python
import sys, math, struct

NAME = "standalone__gqa_block_cached__decode_kernel"
HEADER = """; Kernarg layout for this problem (64 bytes, ptrs only, base s[0:1]):
;
"""

WS_Q, WS_P1, WS_ML, WS_P2, WS_CNT, WS_STAMP = 0x0, 0x40000, 0x80000, 0x90000, 0xd0000, 0x200000
LDS_W, LDS_Q, LDS_O, LDS_ML, LDS_FLAG, LDS_SIZE = 0, 16384, 17408, 25600, 25728, 25744
SPIN_MAX = 40000


class Gen:
    def __init__(self, DP=6, EX=1, W=5, WP=None, pol="nt", stamps=False, wpol="nt", qsleep=4, fsleep=8,
                 t1sleep=0, t2sleep=0, prog=False, layout="local", Wmix=None, FR=0, E=3, W2=7, wotrig=2, fast=True, qmap="local"):
        self.__dict__.update(locals())
        if WP is None: self.WP = W
        self.L = []

    def A(self, s):
        for line in s.strip("\n").split("\n"):
            line = line.strip()
            if not line:
                continue
            self.L.append(line if line.endswith(":") or line.startswith(".") else "    " + line)

    def sleep(self, n):
        return f"s_sleep {n}" if n else ""

    def stamp(self, idx):
        if self.stamps:
            self.A(f"s_memrealtime s[{60+2*idx}:{61+2*idx}]")

    def progstamp(self, loop):
        if self.prog:
            self.pc = getattr(self, "pc", 0) + 1
            if loop: self.A(f"s_cmp_eq_u32 s26, 0\ns_cbranch_scc1 L_np{self.pc}")
            self.A("s_memrealtime s[80:81]\ns_mov_b32 m0, s82\ns_add_u32 s82, s82, 1\ns_waitcnt lgkmcnt(0)\nv_writelane_b32 v26, s80, m0")
            if loop: self.A(f"L_np{self.pc}:")

    def stamp_out(self, n):
        if not self.stamps:
            return
        A = self.A
        A("s_waitcnt lgkmcnt(0)")
        A("s_mov_b64 exec, 1")
        A(f"s_mul_i32 s58, s56, 5\ns_add_u32 s58, s58, s20\ns_lshl_b32 s58, s58, 6\ns_add_u32 s58, s58, {WS_STAMP}")
        A("v_mov_b32 v1, s58")
        for i in range(n):
            A(f"v_mov_b32 v2, s{60+2*i}\nglobal_store_dword v1, v2, s[18:19] offset:{4*i}")
        A("v_mov_b32 v2, s57\nglobal_store_dword v1, v2, s[18:19] offset:56")
        A("s_getreg_b32 s58, hwreg(HW_REG_XCC_ID)\nv_mov_b32 v2, s58\nglobal_store_dword v1, v2, s[18:19] offset:60")

    def streamer(self):
        A, DP, EX, W, WP, pol = self.A, self.DP, self.EX, self.W, self.WP, self.pol
        vOK, vOV, vMA, vMB = 2, 3, 4, 5
        vQ = 8
        vO = 12
        vM, vL, vMX, vT, vAL, vAO = 20, 21, 22, 23, 24, 25
        vD = 28
        vS = 44
        vP = 48
        RING = 56
        self.nv_stream = RING + 32 * DP
        C0 = DP + EX

        def slot(ch): return ch if ch < DP else min(ch, C0) - DP
        def reg(ch, k): return RING + 32 * slot(ch) + 4 * k
        st = dict(n=-4, landed=-4)

        def emit_load(ch, k):
            r = reg(ch, k)
            if k < 4: A(f"buffer_load_dwordx4 v[{r}:{r+3}], v{vOK}, s[24:27], s33 offen offset:{k*1024} {pol}")
            else: A(f"buffer_load_dwordx4 v[{r}:{r+3}], v{vOV}, s[28:31], s33 offen offset:{(k-4)*1024} {pol}")

        def issue(w):
            i = st["n"]
            if i - st["landed"] >= w:
                A(f"s_waitcnt vmcnt({w-1})"); st["landed"] = i - (w - 1)
            if i < 0:
                A(f"buffer_load_dwordx4 v7, s[36:39], s40 offen {self.wpol} lds")
                if i < -1: A("s_add_u32 m0, m0, 0x400\ns_add_u32 s40, s40, 0x10000")
                st["n"] += 1
                return
            if i % 8 == 0 and i > 0: A("s_add_u32 s33, s33, 0x20000")
            emit_load(i // 8, i % 8)
            st["n"] += 1
            if i % 8 == 7: self.progstamp(False)

        def need(i):
            if st["landed"] <= i:
                A(f"s_waitcnt vmcnt({st['n'] - 1 - i})"); st["landed"] = i + 1

        def qk(ch, c):
            A(f"v_mfma_f32_16x16x32_bf16 v[{vD+4*c}:{vD+4*c+3}], v[{reg(ch,c)}:{reg(ch,c)+3}], v[{vQ}:{vQ+3}], 0")

        def pv(ch, c):
            r = reg(ch, 4 + c)
            A(f"v_mfma_f32_16x16x16_bf16 v[{vO}:{vO+3}], v[{vP+2*c}:{vP+2*c+1}], v[{r}:{r+1}], v[{vO}:{vO+3}]")
            A(f"v_mfma_f32_16x16x16_bf16 v[{vO+4}:{vO+7}], v[{vP+2*c}:{vP+2*c+1}], v[{r+2}:{r+3}], v[{vO+4}:{vO+7}]")

        def softmax(tag):
            A("s_nop 5")
            for c in range(4):
                A(f"v_mov_b32_dpp v{vS+c}, v{vD+4*c} quad_perm:[0,0,0,0] row_mask:0xf bank_mask:0xf")
            for r in range(1, 4):
                for c in range(4):
                    A(f"v_add_f32_dpp v{vS+c}, v{vD+4*c+r}, v{vS+c} quad_perm:[{r},{r},{r},{r}] row_mask:0xf bank_mask:0xf")
            A(f"""
            v_max3_f32 v{vMX}, v{vS}, v{vS+1}, v{vS+2}
            v_max_f32 v{vMX}, v{vMX}, v{vS+3}
            v_mul_f32 v{vMX}, s42, v{vMX}
            v_cmp_gt_f32 vcc, v{vMX}, v{vM}
            s_cbranch_vccz L_keep{tag}
            s_call_b64 s[44:45], L_rescale
            L_keep{tag}:
            """)
            for c in range(4): A(f"v_fma_f32 v{vS+c}, v{vS+c}, s42, -v{vM}")
            for c in range(4): A(f"v_exp_f32 v{vS+c}, v{vS+c}")
            for c in range(4):
                A(f"v_cvt_pk_bf16_f32 v{vP+2*c+1}, v{vS+c}, v{vS+c}")
            A(f"v_add_f32 v{vS}, v{vS}, v{vS+1}")
            A(f"v_add_f32 v{vS+2}, v{vS+2}, v{vS+3}")
            for c in range(4):
                A(f"v_and_b32 v{vP+2*c}, v{vP+2*c+1}, v{vMA}")
                A(f"v_and_b32 v{vP+2*c+1}, v{vP+2*c+1}, v{vMB}")
            A(f"v_add_f32 v{vL}, v{vL}, v{vS}")
            A(f"v_add_f32 v{vL}, v{vL}, v{vS+2}")

        A("L_stream:")
        A(f"""
        v_and_b32 v6, 3, v1
        v_lshlrev_b32 v{vOK}, 4, v6
        v_bfe_u32 v7, v1, 2, 2
        v_lshl_add_u32 v{vOK}, v7, 8, v{vOK}
        v_lshrrev_b32 v7, 4, v1
        v_lshl_add_u32 v{vOK}, v7, 6, v{vOK}
        v_lshrrev_b32 v7, 3, v1
        v_lshlrev_b32 v7, 13, v7
        v_and_b32 v8, 7, v1
        v_lshl_add_u32 v7, v8, 4, v7
        s_sub_u32 s40, s20, 1
        s_lshl_b32 m0, s40, 12
        s_lshl_b32 s40, s40, 18
        s_sub_u32 s38, 0x400000, s34
        s_mov_b32 s39, 0x20000
        s_mov_b32 s41, s34
        s_lshl_b32 s34, s55, 2
        s_add_u32 s34, s34, s20
        s_sub_u32 s34, s34, 1
        s_lshl_b32 s33, s34, 12
        s_lshl_b32 s35, s54, 22
        s_mov_b32 s26, 0x400000
        s_mov_b32 s30, 0x400000
        {"s_mov_b32 s82, 0" if self.prog else ""}
        {"v_mov_b32 v26, 0" if self.prog else ""}
        s_waitcnt lgkmcnt(0)
        s_add_u32 s36, s10, s41
        s_addc_u32 s37, s11, 0
        s_add_u32 s24, s6, s35
        s_addc_u32 s25, s7, 0
        s_add_u32 s28, s8, s35
        s_addc_u32 s29, s9, 0
        """)
        bar = False
        for i in range(-4, 8 * DP):
            issue(WP)
            if st["landed"] >= 0 and not bar:
                A("s_barrier"); bar = True
            if i == WP - 5:
                A(f"""
                v_mov_b32 v7, 0xffff
                v_mov_b32 v{vT}, 0xffff0000
                v_cmp_eq_u32 vcc, 0, v6
                v_cmp_eq_u32 s[46:47], 1, v6
                v_cmp_eq_u32 s[48:49], 2, v6
                v_cmp_eq_u32 s[50:51], 3, v6
                v_cndmask_b32 v{vMA}, 0, v7, vcc
                v_cndmask_b32 v{vMA}, v{vMA}, v{vT}, s[46:47]
                v_cndmask_b32 v{vMB}, 0, v7, s[48:49]
                v_cndmask_b32 v{vMB}, v{vMB}, v{vT}, s[50:51]
                v_mov_b32 v{vM}, 0xff7fffff
                v_mov_b32 v{vL}, 0
                """)
                for r in range(8): A(f"v_mov_b32 v{vO+r}, 0")
                bits = struct.unpack("<I", struct.pack("<f", math.log2(math.e) / math.sqrt(128.0)))[0]
                A(f"s_mov_b32 s42, {bits:#x}")
                if self.stamps: A("s_mov_b32 s57, 0")
        self.stamp(1)
        A(f"""
        s_mov_b32 s43, 0
        L_waitq:
        ds_read_b128 v[{vQ}:{vQ+3}], v{vOV} offset:{LDS_Q}
        s_add_u32 s43, s43, 1
        s_waitcnt lgkmcnt(0)
        v_max3_u32 v{vT}, v{vQ}, v{vQ+1}, v{vQ+2}
        v_max_u32 v{vT}, v{vT}, v{vQ+3}
        v_cmp_eq_u32 vcc, -1, v{vT}
        s_cbranch_vccz L_haveq
        s_sleep 1
        s_cmp_lt_u32 s43, {SPIN_MAX * 16}
        s_cbranch_scc1 L_waitq
        L_haveq:
        """)
        self.stamp(2)
        target = 8 * C0 + W
        todo = target - st["n"]
        points = 2 * C0
        done_pts = 0
        def issue_share(limit):
            nonlocal done_pts
            done_pts += 1
            want = 8 * DP + self.FR + -(-(todo - self.FR) * done_pts // points)
            while st["n"] < min(want, limit): issue(W)
        def free_limit(ch, half):
            lim = st["n"]
            while lim < target:
                c2, k2 = lim // 8, lim % 8
                prev = c2 - DP
                if prev < ch or (prev == ch and k2 < 4 * half): lim += 1
                else: break
            return lim
        for ch in range(C0):
            A(f"; --- chunk {ch}")
            for c in range(4):
                need(8 * ch + c); qk(ch, c)
            issue_share(free_limit(ch, 1))
            softmax(f"p{ch}")
            for c in range(4):
                need(8 * ch + 4 + c); pv(ch, c)
            issue_share(free_limit(ch, 2))
        assert st["n"] == target, (st, target)
        E, W2 = self.E, self.W2
        A(f"s_mov_b32 s43, {32 - C0}")
        def loop(label, w, last):
            A(f"{label}:")
            for k in range(8):
                A(f"s_waitcnt vmcnt({w-1})")
                k2 = k + w
                if k2 == 8:
                    A("s_add_u32 s33, s33, 0x20000\ns_sub_u32 s43, s43, 1")
                    if last:
                        A("s_cmp_lg_u32 s43, 0\ns_cselect_b32 s26, s26, 0\ns_cselect_b32 s30, s30, 0")
                emit_load(C0, k2 % 8)
                if k2 % 8 == 7: self.progstamp(True)
                if k < 4: qk(C0, k)
                else: pv(C0, k - 4)
                if k == 3: softmax(label)
                if k == 5 and self.wotrig is not None and (last == (self.wotrig < max(E, 1)) or not E):
                    A(f"s_cmp_lg_u32 s43, {self.wotrig}\ns_cbranch_scc1 {label}_nt\nds_write_b32 v{vOV}, v{vOV} offset:{LDS_FLAG}\n{label}_nt:".replace("ds_write_b32", "s_mov_b64 exec, 1\nds_write_b32").replace(f"\n{label}_nt:", f"\ns_mov_b64 exec, -1\n{label}_nt:"))
            A(f"s_cmp_lg_u32 s43, {0 if last else E}")
            A(f"s_cbranch_scc1 {label}")
        if E:
            loop("L_loop", W, False)
            for k in range(W, W2): emit_load(C0, k)
            loop("L_loop2", W2, True)
        else:
            loop("L_loop", W, True)
        A("s_branch L_done")
        A(f"""
        L_rescale:
        v_mov_b32 v{vT}, v{vMX}
        s_nop 1
        v_permlane16_swap_b32 v{vMX}, v{vT}
        s_nop 1
        v_max_f32 v{vMX}, v{vMX}, v{vT}
        v_mov_b32 v{vT}, v{vMX}
        s_nop 1
        v_permlane32_swap_b32 v{vMX}, v{vT}
        s_nop 1
        v_max3_f32 v{vMX}, v{vMX}, v{vT}, v{vM}
        v_sub_f32 v{vAL}, v{vM}, v{vMX}
        v_exp_f32 v{vAL}, v{vAL}
        v_mov_b32 v{vM}, v{vMX}
        v_mul_f32 v{vL}, v{vL}, v{vAL}
        s_nop 0
        """)
        for g in range(4):
            A(f"v_mov_b32_dpp v{vAO}, v{vAL} row_newbcast:{4*g} row_mask:{1<<g:#x} bank_mask:0xf")
            A("s_nop 1")
        for r in range(8): A(f"v_mul_f32 v{vO+r}, v{vO+r}, v{vAO}")
        A("s_setpc_b64 s[44:45]")

        A("L_done:")
        self.stamp(3)
        A(f"""
        v_mov_b32 v{vT}, v{vL}
        s_sub_u32 s34, s20, 1
        s_lshl_b32 s35, s34, 11
        v_permlane16_swap_b32 v{vL}, v{vT}
        v_lshrrev_b32 v6, 4, v1
        v_and_b32 v7, 15, v1
        v_add_f32 v{vL}, v{vL}, v{vT}
        v_mov_b32 v{vT}, v{vL}
        v_lshlrev_b32 v6, 9, v6
        v_lshl_add_u32 v6, v7, 5, v6
        v_permlane32_swap_b32 v{vL}, v{vT}
        v_add_u32 v6, s35, v6
        s_lshl_b32 s35, s34, 2
        v_add_f32 v{vL}, v{vL}, v{vT}
        v_lshl_add_u32 v7, v1, 2, s35
        ds_write_b128 v6, v[{vO}:{vO+3}] offset:{LDS_O}
        ds_write_b128 v6, v[{vO+4}:{vO+7}] offset:{LDS_O+16}
        s_mov_b64 exec, 0x1111
        ds_write_b32 v7, v{vM} offset:{LDS_ML}
        ds_write_b32 v7, v{vL} offset:{LDS_ML+64}
        s_mov_b64 exec, -1
        s_lshl_b32 s35, s34, 9
        v_lshl_add_u32 v6, v1, 3, s35
        s_lshl_b32 s35, s34, 4
        v_mov_b32 v7, s35
        s_waitcnt lgkmcnt(0)
        s_barrier
        ds_read_b128 v[28:31], v7 offset:{LDS_ML}
        ds_read_b128 v[32:35], v7 offset:{LDS_ML+64}
        ds_read_b64 v[36:37], v6 offset:{LDS_O}
        ds_read_b64 v[38:39], v6 offset:{LDS_O+2048}
        ds_read_b64 v[40:41], v6 offset:{LDS_O+4096}
        ds_read_b64 v[42:43], v6 offset:{LDS_O+6144}
        v_mov_b32 v52, 0
        ds_read_b32 v52, v52 offset:{LDS_FLAG+4}
        s_lshl_b32 s35, s56, 10
        s_lshl_b32 s36, s34, 8
        s_add_u32 s35, s35, s36
        s_add_u32 s35, s35, {WS_P1}
        v_lshl_add_u32 v6, v1, 2, s35
        s_lshl_b32 s35, s56, 4
        s_add_u32 s35, s35, s34
        s_lshl_b32 s35, s35, 3
        s_add_u32 s35, s35, {WS_ML}
        v_mov_b32 v7, s35
        s_waitcnt lgkmcnt(6)
        v_max3_f32 v44, v28, v29, v30
        v_max_f32 v44, v44, v31
        v_sub_f32 v28, v28, v44
        v_sub_f32 v29, v29, v44
        v_sub_f32 v30, v30, v44
        v_sub_f32 v31, v31, v44
        v_exp_f32 v28, v28
        v_exp_f32 v29, v29
        v_exp_f32 v30, v30
        v_exp_f32 v31, v31
        s_waitcnt lgkmcnt(0)
        v_mul_f32 v46, v28, v36
        v_mul_f32 v47, v28, v37
        v_mul_f32 v45, v28, v32
        v_fmac_f32 v46, v29, v38
        v_fmac_f32 v47, v29, v39
        v_fmac_f32 v45, v29, v33
        v_fmac_f32 v46, v30, v40
        v_fmac_f32 v47, v30, v41
        v_fmac_f32 v45, v30, v34
        v_fmac_f32 v46, v31, v42
        v_fmac_f32 v47, v31, v43
        v_fmac_f32 v45, v31, v35
        v_cvt_pk_bf16_f32 v48, v46, v47
        v_min_u32 v44, -2, v44
        v_min_u32 v48, -2, v48
        v_min_u32 v45, -2, v45
        v_cmp_eq_u32 vcc, 1, v52
        v_mov_b32_dpp v49, v48 quad_perm:[1,1,1,1] row_mask:0xf bank_mask:0xf
        v_mov_b32_dpp v50, v48 quad_perm:[2,2,2,2] row_mask:0xf bank_mask:0xf
        v_mov_b32_dpp v51, v48 quad_perm:[3,3,3,3] row_mask:0xf bank_mask:0xf
        s_mov_b32 exec_lo, 0x11111111
        s_mov_b32 exec_hi, 0x11111111
        s_cbranch_vccnz L_pub_near
        global_store_dwordx4 v6, v[48:51], s[18:19] sc1
        s_mov_b64 exec, 1
        global_store_dwordx2 v7, v[44:45], s[18:19] sc1
        s_branch L_pub_done
        L_pub_near:
        global_store_dwordx4 v6, v[48:51], s[18:19]
        s_mov_b64 exec, 1
        global_store_dwordx2 v7, v[44:45], s[18:19]
        L_pub_done:
        """)
        self.stamp(4)
        if self.prog:
            A(f"s_mov_b64 exec, -1\ns_lshl_b32 s58, s2, 2\ns_add_u32 s58, s58, s20\ns_sub_u32 s58, s58, 1\ns_lshl_b32 s58, s58, 8\ns_add_u32 s58, s58, {WS_STAMP + 0x100000}")
            A("v_lshl_add_u32 v2, v1, 2, s58\nglobal_store_dword v2, v26, s[18:19]")
        self.stamp_out(5)
        A("s_endpgm")

    def helper_head(self):
        A, wpol = self.A, self.wpol
        A(f"""
        s_setprio 3
        v_lshrrev_b32 v2, 3, v1
        v_and_b32 v4, 7, v1
        v_lshlrev_b32 v5, 4, v4
        v_lshl_add_u32 v2, v2, 10, v5
        s_lshl_b32 s51, s54, 13
        s_lshl_b32 s52, s54, 8
        s_add_u32 s52, s52, {WS_CNT}
        v_lshrrev_b32 v6, 4, v1
        v_and_b32 v14, 3, v1
        v_lshlrev_b32 v4, 10, v14
        v_lshl_add_u32 v4, v6, 4, v4
        s_lshl_b32 s35, s53, 8
        v_add_u32 v4, s35, v4
        v_mov_b32 v8, -1
        v_mov_b32 v9, -1
        v_mov_b32 v10, -1
        v_mov_b32 v11, -1
        s_cmp_lg_u32 s55, 0
        s_waitcnt lgkmcnt(0)
        s_cbranch_scc1 L_noclear
        v_add_u32 v12, s51, v3
        v_add_u32 v13, 0x1000, v12
        v_mov_b32 v7, s52
        v_mov_b32 v5, 0
        """)
        for i in range(8):
            A(f"global_store_dwordx4 v{12 + i // 4}, v[8:11], s[18:19] offset:{(i % 4) * 1024} sc1")
        A(f"""
        s_mov_b64 exec, 1
        global_store_dword v7, v5, s[18:19] sc1
        s_mov_b64 exec, -1
        L_noclear:
        """)
        for t in range(4):
            A(f"global_load_dwordx4 v[{96+4*t}:{99+4*t}], v4, s[4:5] offset:{64*t}")
        A("s_branch L_helper")

    def helper(self):
        A, wpol = self.A, self.wpol
        A("L_helper:")
        A(f"""
        ds_write_b128 v3, v[8:11] offset:{LDS_Q}
        v_mov_b32 v5, 0
        ds_write_b64 v5, v[8:9] offset:{LDS_FLAG}
        s_getpc_b64 s[36:37]
        L_pc:
        s_sub_u32 s36, s36, L_pc-{NAME}
        s_subb_u32 s37, s37, 0
        v_lshl_add_u32 v4, v1, 5, s21
        v_lshlrev_b32 v4, 7, v4
        v_min_u32 v4, L_code_end-{NAME}-4, v4
        s_mov_b64 exec, 7
        global_load_dword v5, v4, s[36:37]
        s_mov_b64 exec, -1
        s_and_b32 s40, s54, 7
        s_cmp_lg_u32 s55, 0
        s_cbranch_scc1 L_nosig
        s_lshl_b32 s35, s40, 5
        s_add_u32 s46, s16, s35
        s_addc_u32 s47, s17, 0
        s_mov_b32 s48, 1
        s_waitcnt vmcnt(5)
        s_atomic_add s48, s[46:47], 0x0
        L_nosig:
        s_lshr_b32 s35, s23, 3
        v_mov_b32 v22, s35
        v_mov_b32 v4, s40
        v_cmp_eq_u32 vcc, 1, v1
        v_and_b32 v7, 15, v1
        v_lshrrev_b32 v13, 2, v7
        v_cndmask_b32 v22, v22, v4, vcc
        v_lshlrev_b32 v22, 5, v22
        v_lshlrev_b32 v15, 16, v14
        v_lshl_add_u32 v15, v13, 6, v15
        v_lshl_add_u32 v15, v6, 4, v15
        s_lshl_b32 s35, s35, 13
        s_lshl_b32 s41, s53, 11
        s_add_u32 s35, s35, s41
        s_and_b32 s41, s23, 7
        s_lshl_b32 s41, s41, 8
        s_add_u32 s35, s35, s41
        v_add_u32 v15, s35, v15
        v_lshlrev_b32 v23, 5, v14
        v_lshl_add_u32 v23, v13, 9, v23
        v_lshl_add_u32 v23, v6, 7, v23
        v_add_u32 v23, s51, v23
        v_add_u32 v29, 0x1000, v23
        v_lshl_add_u32 v13, v6, 3, v13
        v_lshlrev_b32 v13, 7, v13
        v_lshl_add_u32 v13, v14, 3, v13
        s_waitcnt lgkmcnt(0)
        s_barrier
        s_mov_b64 exec, 3
        global_load_dword v24, v22, s[16:17] sc1
        s_mov_b64 exec, -1
        s_waitcnt vmcnt(2)
        """)
        self.stamp(1)
        WR, XR, QA = 32, 96, 112
        def rd(k):
            t, nt = k // 4, k % 4
            r = WR + 16 * t + 4 * nt
            A(f"ds_read_b64_tr_b16 v[{r}:{r+1}], v13 offset:{LDS_W + t*4096 + nt*32}")
            A(f"ds_read_b64_tr_b16 v[{r+2}:{r+3}], v13 offset:{LDS_W + t*4096 + nt*32 + 512}")
        for k in range(6): rd(k)
        for k in range(16):
            t, nt = k // 4, k % 4
            A(f"s_waitcnt lgkmcnt({2*min(5, 15-k)})")
            c = QA + 4 * nt
            src = "0" if t == 0 else f"v[{c}:{c+3}]"
            A(f"v_mfma_f32_16x16x32_bf16 v[{c}:{c+3}], v[{WR+4*k}:{WR+4*k+3}], v[{XR+4*t}:{XR+4*t+3}], {src}")
            if k + 6 < 16: rd(k + 6)
        A("s_mov_b32 s49, 0\ns_nop 4")
        for nt in range(1, 4):
            for r in range(4):
                A(f"v_mov_b32_dpp v{QA+r}, v{QA+4*nt+r} quad_perm:[0,1,2,3] row_mask:0xf bank_mask:{1<<nt:#x}")
        for r in range(4): A(f"v_min_u32 v{QA+r}, -2, v{QA+r}")
        A(f"""
        s_mov_b64 exec, 3
        s_branch L_chkflag
        L_pollflag:
        {self.sleep(self.fsleep)}
        global_load_dword v24, v22, s[16:17] sc1
        L_chkflag:
        s_add_u32 s49, s49, 1
        s_waitcnt vmcnt(0)
        v_cmp_gt_u32 vcc, 4, v24
        s_cbranch_vccz L_gotflag
        s_cmp_lt_u32 s49, {SPIN_MAX}
        s_cbranch_scc1 L_pollflag
        L_gotflag:
        s_mov_b64 exec, -1
        global_store_dwordx4 v15, v[{QA}:{QA+3}], s[18:19] sc1
        """)
        self.stamp(2)
        A(f"""
        s_lshl_b32 s35, s56, 10
        s_add_u32 s35, s35, {WS_P1}
        v_add_u32 v16, s35, v3
        global_store_dwordx4 v16, v[8:11], s[18:19] sc1
        s_and_b32 s38, s21, 3
        s_lshl_b32 s39, s22, 2
        s_add_u32 s38, s38, s39
        s_lshr_b32 s39, s21, 2
        s_lshl_b32 s35, s38, 3
        s_add_u32 s35, s35, s39
        s_lshl_b32 s35, s35, 10
        s_add_u32 s35, s35, {WS_P2}
        v_add_u32 v12, s35, v3
        global_store_dwordx4 v12, v[8:11], s[18:19] sc1
        s_lshl_b32 s35, s56, 7
        s_add_u32 s35, s35, {WS_ML}
        v_add_u32 v17, s35, v3
        s_mov_b64 exec, 0xff
        global_store_dwordx4 v17, v[8:11], s[18:19] sc1
        s_mov_b64 exec, -1
        s_getreg_b32 s59, hwreg(HW_REG_XCC_ID, 0, 3)
        s_lshl_b32 s59, s59, 2
        s_lshl_b32 s48, 1, s59
        s_add_u32 s46, s18, s52
        s_addc_u32 s47, s19, 0
        s_mov_b32 s49, 0
        s_waitcnt vmcnt(0)
        s_atomic_add s48, s[46:47], 0x0
        s_branch L_pollq1
        L_pollq:
        {self.sleep(self.qsleep)}
        L_pollq1:
        """)
        for kq in range(4):
            for e in range(2):
                r = WR + 8 * kq + 4 * e
                A(f"global_load_dwordx4 v[{r}:{r+3}], v{23 if kq < 2 else 29}, s[18:19] offset:{(kq % 2) * 2048 + 16 * e} sc1")
        A("s_add_u32 s49, s49, 1")
        for k in range(8):
            r = WR + 4 * k
            A(f"s_waitcnt vmcnt({7-k})")
            if k == 0:
                A(f"v_max_u32 v22, v{r}, v{r+1}")
            else:
                A(f"v_max3_u32 v22, v22, v{r}, v{r+1}")
            A(f"v_max3_u32 v22, v22, v{r+2}, v{r+3}")
        A(f"""
        v_cmp_eq_u32 vcc, -1, v22
        s_cmp_ge_u32 s49, {SPIN_MAX}
        s_cbranch_scc1 L_gotq
        s_and_b64 exec, exec, vcc
        s_cbranch_scc1 L_pollq
        L_gotq:
        s_mov_b64 exec, -1
        """)
        for j in range(8): A(f"v_add_f32 v{WR+j}, v{WR+j}, v{WR+8+j}")
        for j in range(8): A(f"v_add_f32 v{WR+16+j}, v{WR+16+j}, v{WR+24+j}")
        for j in range(8): A(f"v_add_f32 v{WR+j}, v{WR+j}, v{WR+16+j}")
        for j in range(4): A(f"v_cvt_pk_bf16_f32 v{24+j}, v{WR+2*j}, v{WR+2*j+1}")
        for j in range(4): A(f"v_min_u32 v{24+j}, -2, v{24+j}")
        A(f"ds_write_b128 v3, v[24:27] offset:{LDS_Q}")
        self.stamp(3)
        if self.stamps: A("s_mov_b32 s57, s49")
        A(f"""
        s_lshl_b32 s35, s38, 17
        s_lshl_b32 s41, s39, 7
        s_add_u32 s35, s35, s41
        s_add_u32 s24, s12, s35
        s_addc_u32 s25, s13, 0
        s_sub_u32 s26, 0x400000, s35
        s_mov_b32 s33, 0
        s_mov_b32 m0, {LDS_W}
        v_and_b32 v4, 3, v1
        v_lshlrev_b32 v22, 8, v1
        v_add_u32 v22, {WS_CNT}, v22
        """)
        self.stamp(4)
        AR = 96
        A(f"""
        v_lshlrev_b32 v23, 5, v1
        v_mov_b32 v5, 0
        s_mov_b32 s49, 0
        s_mov_b64 exec, 0xff
        L_pollz:
        global_load_dword v24, v23, s[16:17] sc1
        s_add_u32 s49, s49, 1
        s_waitcnt vmcnt(0)
        v_cmp_gt_u32 vcc, 4, v24
        s_cbranch_vccz L_gotz
        s_sleep 32
        s_cmp_lt_u32 s49, {SPIN_MAX}
        s_cbranch_scc1 L_pollz
        L_gotz:
        s_mov_b32 exec_lo, -1
        L_pollall:
        global_load_dword v24, v22, s[18:19] sc1
        s_add_u32 s49, s49, 1
        s_waitcnt vmcnt(0)
        v_and_b32 v25, 0x0f0f0f0f, v24
        v_lshrrev_b32 v26, 4, v24
        v_and_b32 v26, 0x0f0f0f0f, v26
        v_add_u32 v25, v25, v26
        v_sad_u8 v25, v25, 0, 0
        v_cmp_ne_u32 vcc, 8, v25
        s_cbranch_vccz L_gotall
        s_sleep 64
        s_cmp_lt_u32 s49, {SPIN_MAX}
        s_cbranch_scc1 L_pollall
        L_gotall:
        s_lshl_b32 s48, 8, s59
        v_cmp_eq_u32 vcc, s48, v24
        s_and_b32 s40, s54, 7
        s_lshl_b32 s41, 0x01010101, s40
        s_and_b32 s35, vcc_lo, s41
        s_cmp_eq_u32 s35, s41
        s_cselect_b32 s35, {1 if self.fast and self.layout == "local" else 0}, 0
        v_mov_b32 v25, s35
        s_cmp_eq_u32 s39, s22
        s_cselect_b32 s59, s35, 0
        s_mov_b64 exec, 1
        ds_write_b32 v5, v25 offset:{LDS_FLAG+4}
        s_mov_b64 exec, -1
        s_lshr_b32 s40, s38, 2
        s_and_b32 s41, s38, 3
        v_lshrrev_b32 v15, 2, v7
        v_lshlrev_b32 v15, 16, v15
        v_lshl_add_u32 v15, v4, 10, v15
        v_lshl_add_u32 v15, v6, 4, v15
        s_lshl_b32 s35, s40, 13
        s_lshl_b32 s50, s41, 8
        s_add_u32 s35, s35, s50
        s_add_u32 s35, s35, {WS_P1}
        v_add_u32 v15, s35, v15
        v_add_u32 v16, 0x1000, v15
        v_and_b32 v17, 7, v1
        v_lshlrev_b32 v17, 7, v17
        v_lshl_add_u32 v17, v6, 13, v17
        s_lshl_b32 s35, s40, 10
        s_lshl_b32 s50, s41, 3
        s_add_u32 s35, s35, s50
        s_add_u32 s35, s35, {WS_ML}
        v_add_u32 v17, s35, v17
        v_lshrrev_b32 v18, 1, v1
        v_lshlrev_b32 v18, 13, v18
        v_and_b32 v19, 1, v1
        v_lshl_add_u32 v18, v19, 4, v18
        s_lshl_b32 s35, s22, 10
        s_lshl_b32 s50, s21, 5
        s_add_u32 s35, s35, s50
        s_add_u32 s35, s35, {WS_P2}
        v_add_u32 v18, s35, v18
        v_and_b32 v19, 1, v6
        v_lshlrev_b32 v19, 6, v19
        v_lshrrev_b32 v20, 1, v6
        v_lshl_add_u32 v19, v20, 5, v19
        s_lshr_b32 s35, s21, 3
        s_lshl_b32 s35, s35, 10
        s_lshl_b32 s50, s22, 7
        s_add_u32 s35, s35, s50
        s_and_b32 s50, s21, 7
        s_lshl_b32 s50, s50, 2
        s_add_u32 s35, s35, s50
        v_add_u32 v19, s35, v19
        s_mov_b32 s49, 0
        """)
        if self.wotrig is not None:
            A(f"""
            v_mov_b32 v5, 0
            s_mov_b32 s49, 0
            L_waitend:
            s_sleep 4
            ds_read_b32 v24, v5 offset:{LDS_FLAG}
            s_add_u32 s49, s49, 1
            s_waitcnt lgkmcnt(0)
            v_cmp_eq_u32 vcc, -1, v24
            s_cbranch_vccz L_nearend
            s_cmp_lt_u32 s49, {SPIN_MAX * 16}
            s_cbranch_scc1 L_waitend
            L_nearend:
            """)
        A(f"""
        L_wo:
        {"s_waitcnt vmcnt(0)" if self.wotrig is None else "s_nop 0"}
        buffer_load_dwordx4 v2, s[24:27], s33 offen {wpol} lds
        s_add_u32 m0, m0, 0x400
        s_add_u32 s33, s33, 0x2000
        s_cmp_lt_u32 s33, 0x20000
        s_cbranch_scc1 L_wo
        """)
        A("s_mov_b32 s49, 0\ns_waitcnt vmcnt(0)")
        BR = 32
        for t in range(4):
            for nt in range(4):
                r = BR + 16 * t + 4 * nt
                A(f"ds_read_b64_tr_b16 v[{r}:{r+1}], v13 offset:{LDS_W + t*4096 + nt*32}")
                A(f"ds_read_b64_tr_b16 v[{r+2}:{r+3}], v13 offset:{LDS_W + t*4096 + nt*32 + 512}")
            A("s_waitcnt lgkmcnt(0)")
        A("s_barrier")
        self.stamp(5)
        A("L_poll1:")
        A(self.sleep(self.t1sleep))
        A("global_load_dwordx2 v[20:21], v17, s[18:19] sc1")
        for u in range(2):
            for t in range(4):
                r = AR + 16 * u + 4 * t
                A(f"global_load_dwordx4 v[{r}:{r+3}], v{15+u}, s[18:19] offset:{64*t} sc1")
        A("s_add_u32 s49, s49, 1")
        A("s_waitcnt vmcnt(8)")
        A("v_max_u32 v22, v20, v21")
        for k in range(8):
            r = AR + 4 * k
            A(f"s_waitcnt vmcnt({7-k})")
            A(f"v_max3_u32 v22, v22, v{r}, v{r+1}")
            A(f"v_max3_u32 v22, v22, v{r+2}, v{r+3}")
        A(f"""
        v_cmp_eq_u32 vcc, -1, v22
        s_cmp_ge_u32 s49, {SPIN_MAX}
        s_cbranch_scc1 L_got1
        s_and_b64 exec, exec, vcc
        s_cbranch_scc1 L_poll1
        L_got1:
        s_mov_b64 exec, -1
        """)
        self.stamp(6)
        CR = 128
        wl = [
            "v_max_f32_dpp v22, v20, v20 row_ror:1 row_mask:0xf bank_mask:0xf",
            "v_max_f32_dpp v22, v22, v22 row_ror:2 row_mask:0xf bank_mask:0xf",
            "v_max_f32_dpp v22, v22, v22 row_ror:4 row_mask:0xf bank_mask:0xf",
            "v_sub_f32 v22, v20, v22",
            "v_exp_f32 v22, v22",
            "v_mul_f32 v23, v22, v21",
            "v_add_f32_dpp v23, v23, v23 row_ror:1 row_mask:0xf bank_mask:0xf",
            "v_add_f32_dpp v23, v23, v23 row_ror:2 row_mask:0xf bank_mask:0xf",
            "v_add_f32_dpp v23, v23, v23 row_ror:4 row_mask:0xf bank_mask:0xf",
            "v_rcp_f32 v23, v23",
            "v_mul_f32 v22, v22, v23",
        ]
        k = 0
        for t in range(4):
            for u in range(2):
                for nt in range(4):
                    a, b, c = AR + 16 * u + 4 * t, BR + 16 * t + 4 * nt, CR + 16 * u + 4 * nt
                    src = "0" if t == 0 else f"v[{c}:{c+3}]"
                    A(f"v_mfma_f32_16x16x32_bf16 v[{c}:{c+3}], v[{a}:{a+3}], v[{b}:{b+3}], {src}")
                    k += 1
                    if k % 2 == 0 and wl: A(wl.pop(0))
        assert not wl
        A("s_nop 4")
        for u in range(2):
            for r in range(4):
                for nt in range(4):
                    c = CR + 16 * u + 4 * nt + r
                    op = "v_mul_f32_dpp" if (u == 0 and r == 0) else "v_fmac_f32_dpp"
                    A(f"{op} v{24+nt}, v22, v{c} row_newbcast:{4*u+r} row_mask:0xf bank_mask:0xf")
        for nt in range(4): A(f"v_min_u32 v{24+nt}, -2, v{24+nt}")
        A(f"""
        s_cmp_eq_u32 s59, 1
        s_mov_b32 s49, 0
        s_cbranch_scc1 L_p2_near
        global_store_dwordx4 v12, v[24:27], s[18:19] sc1
        s_branch L_p2_done
        L_p2_near:
        global_store_dwordx4 v12, v[24:27], s[18:19]
        L_p2_done:
        """)
        self.stamp(7)
        A(f"""
        L_poll2:
        {self.sleep(self.t2sleep)}
        global_load_dwordx4 v[28:31], v18, s[18:19] sc1
        s_add_u32 s49, s49, 1
        s_waitcnt vmcnt(0)
        v_max3_u32 v22, v28, v29, v30
        v_max_u32 v22, v22, v31
        v_cmp_eq_u32 vcc, -1, v22
        s_cmp_ge_u32 s49, {SPIN_MAX}
        s_cbranch_scc1 L_got2
        s_and_b64 exec, exec, vcc
        s_cbranch_scc1 L_poll2
        L_got2:
        s_mov_b64 exec, -1
        """)
        self.stamp(8)
        A(f"""
        v_permlane32_swap_b32 v28, v29
        v_permlane32_swap_b32 v30, v31
        s_nop 1
        v_add_f32 v28, v28, v29
        v_add_f32 v30, v30, v31
        s_nop 1
        v_permlane16_swap_b32 v28, v30
        s_nop 1
        v_add_f32 v28, v28, v30
        s_nop 1
        v_add_f32_dpp v28, v28, v28 row_ror:2 row_mask:0xf bank_mask:0xf
        s_nop 1
        v_add_f32_dpp v28, v28, v28 row_ror:4 row_mask:0xf bank_mask:0xf
        s_nop 1
        v_add_f32_dpp v28, v28, v28 row_ror:8 row_mask:0xf bank_mask:0xf
        s_nop 1
        v_mov_b32_dpp v29, v28 quad_perm:[1,1,1,1] row_mask:0xf bank_mask:0xf
        s_mov_b32 exec_lo, 0x00010001
        s_mov_b32 exec_hi, 0x00010001
        v_cvt_pk_bf16_f32 v28, v28, v29
        global_store_dword v19, v28, s[14:15]
        """)
        self.stamp(9)
        self.stamp_out(10)
        A("L_end:")
        A("s_endpgm")

    def build(self):
        A = self.A
        self.L.append(HEADER.rstrip("\n"))
        self.L.append(f"; @launch grid=(256,1,1) block=(320,1,1) lds={LDS_SIZE}")
        A('.amdgcn_target "amdgcn-amd-amdhsa--gfx950"')
        A(".text")
        A(f".globl {NAME}\n.p2align 8\n.type {NAME},@function\n{NAME}:")
        A("""
        s_cmp_ge_u32 s2, 256
        s_cbranch_scc1 L_end
        s_load_dwordx16 s[4:19], s[0:1], 0
        """)
        self.stamp(0)
        A("""
        v_lshrrev_b32 v2, 6, v0
        v_and_b32 v1, 63, v0
        s_lshr_b32 s21, s2, 3
        v_readfirstlane_b32 s20, v2
        s_and_b32 s22, s2, 7
        v_lshlrev_b32 v3, 4, v1
        s_mov_b32 s27, 0x20000
        s_mov_b32 s31, 0x20000
        """)
        if self.layout == "spread":
            A("s_mov_b32 s54, s21\ns_mov_b32 s55, s22")
        elif self.layout == "local":
            A("s_and_b32 s54, s21, 24\ns_add_u32 s54, s54, s22\ns_and_b32 s55, s21, 7")
        elif self.layout == "pair":
            A("s_lshr_b32 s54, s22, 1\ns_and_b32 s55, s21, 28\ns_add_u32 s54, s54, s55")
            A("s_and_b32 s55, s21, 3\ns_lshl_b32 s55, s55, 1\ns_and_b32 s56, s22, 1\ns_add_u32 s55, s55, s56")
        if self.qmap == "local":
            A("s_lshl_b32 s23, s22, 3\ns_and_b32 s35, s21, 7\ns_add_u32 s23, s23, s35\ns_lshr_b32 s53, s21, 3")
        else:
            A("s_and_b32 s23, s22, 3\ns_lshl_b32 s23, s23, 4\ns_and_b32 s35, s21, 15\ns_add_u32 s23, s23, s35")
            A("s_lshr_b32 s53, s22, 2\ns_lshl_b32 s53, s53, 1\ns_lshr_b32 s35, s21, 4\ns_add_u32 s53, s53, s35")
        A("s_lshl_b32 s34, s53, 20\ns_lshl_b32 s35, s23, 7\ns_add_u32 s34, s34, s35")
        A("""
        s_lshl_b32 s56, s54, 3
        s_add_u32 s56, s56, s55
        s_cmp_lg_u32 s20, 0
        s_cbranch_scc1 L_stream
        """)
        self.helper_head()
        self.streamer()
        self.helper()
        A("L_code_end:")
        nv = max(self.nv_stream, 160)
        A(f""".section .rodata,"a"
.p2align 6
.amdhsa_kernel {NAME}
  .amdhsa_next_free_vgpr {nv}
  .amdhsa_next_free_sgpr 96
  .amdhsa_accum_offset {(nv + 3) // 4 * 4}
  .amdhsa_group_segment_fixed_size 0
  .amdhsa_kernarg_size 64
  .amdhsa_user_sgpr_count 2
  .amdhsa_user_sgpr_kernarg_segment_ptr 1
  .amdhsa_system_sgpr_workgroup_id_x 1
  .amdhsa_float_denorm_mode_32 3
.end_amdhsa_kernel""")
        return "\n".join(self.L) + "\n"


if __name__ == "__main__":
    out = sys.argv[1] if len(sys.argv) > 1 else "standalone__gqa_block_cached__decode.s"
    kw = eval("dict(" + (sys.argv[2] if len(sys.argv) > 2 else "") + ")")
    open(out, "w").write(Gen(**kw).build())
```

```python
import sys, math, struct

NAME = "standalone__gqa_block_cached__decode_kernel"
HEADER = """; Kernarg layout for this problem (64 bytes, ptrs only, base s[0:1]):
;   offset  48: d_debug   256 bytes (zero at entry: first counters)
;
"""

WS_Q, WS_P1, WS_ML, WS_P2, WS_CNT, WS_STAMP = 0x0, 0x40000, 0x80000, 0x90000, 0xd0000, 0x200000
CS = 4352
LDS_W, LDS_Q, LDS_O, LDS_ML, LDS_FLAG, LDS_WF, LDS_SIZE = 0, 16384, 17408, 25600, 25728, 25744, 25760
SPIN_MAX = 40000


class Gen:
    def __init__(self, DP=5, EX=2, FR=3, W=5, WP=5, E=3, W2=7, pol="nt", wpol="nt", fsleep=16, csleep=24,
                 wofirst=2, wopace=1, ms=(), table=(0, 0, 0, 0, 1, 2, 4, 8), base=0, lagk=2, b0="first", neg=False, rk=256, w8=0, etab=None, t1=0, t2=0, nopoll=False,
                 split=2, align=True, forcefar=False, p2depth=1, stamps=False, prog=False):
        self.__dict__.update(locals())
        self.L = []

    def A(self, s):
        for line in s.strip("\n").split("\n"):
            line = line.strip()
            if not line:
                continue
            self.L.append(line if line.endswith(":") or line.startswith(".") else "    " + line)

    def stamp(self, idx):
        if self.stamps:
            self.A(f"s_memrealtime s[{60+2*idx}:{61+2*idx}]")

    def progstamp(self):
        if self.prog:
            self.A("s_memrealtime s[80:81]\ns_mov_b32 m0, s82\ns_add_u32 s82, s82, 1\ns_waitcnt lgkmcnt(0)\nv_writelane_b32 v26, s80, m0")

    def stamp_out(self, n):
        if not self.stamps:
            return
        A = self.A
        A("s_waitcnt lgkmcnt(0)")
        A("s_mov_b64 exec, 1")
        A(f"s_mul_i32 s58, s56, 5\ns_add_u32 s58, s58, s20\ns_lshl_b32 s58, s58, 6\ns_add_u32 s58, s58, {WS_STAMP}")
        A("v_mov_b32 v1, s58")
        for i in range(n):
            A(f"v_mov_b32 v2, s{60+2*i}\nglobal_store_dword v1, v2, s[18:19] offset:{4*i}")
        A("v_mov_b32 v2, s57\nglobal_store_dword v1, v2, s[18:19] offset:56")
        A("s_getreg_b32 s58, hwreg(HW_REG_XCC_ID)\nv_mov_b32 v2, s58\nglobal_store_dword v1, v2, s[18:19] offset:60")

    def streamer(self):
        A, DP, EX, W, WP, E, W2, pol = self.A, self.DP, self.EX, self.W, self.WP, self.E, self.W2, self.pol
        vOK, vOV, vMA, vMB = 2, 3, 4, 5
        vQ, vO = 8, 12
        vM, vL, vMX, vT, vAL, vAO = 20, 21, 22, 23, 24, 25
        vD, vS, vP, RING = 28, 44, 48, 56
        self.nv_stream = RING + 32 * DP
        C0 = DP + EX
        assert EX >= 1 and E >= 1

        def slot(ch): return ch if ch < DP else min(ch, C0) - DP
        def reg(ch, k): return RING + 32 * slot(ch) + 4 * k
        st = dict(n=-4, landed=-4)

        def emit_load(ch, k):
            r = reg(ch, k)
            if k < 4: A(f"buffer_load_dwordx4 v[{r}:{r+3}], v{vOK}, s[24:27], s33 offen offset:{k*1024} {pol}")
            else: A(f"buffer_load_dwordx4 v[{r}:{r+3}], v{vOV}, s[28:31], s33 offen offset:{(k-4)*1024} {pol}")
            if k == 7: self.progstamp()

        def issue(w):
            i = st["n"]
            if i - st["landed"] >= w:
                A(f"s_waitcnt vmcnt({w-1})"); st["landed"] = i - (w - 1)
            if i < 0:
                A(f"buffer_load_dwordx4 v7, s[36:39], s40 offen {self.wpol} lds")
                if i < -1: A("s_add_u32 m0, m0, 0x400\ns_add_u32 s40, s40, 0x10000")
            else:
                if i % 8 == 0 and i > 0: A("s_add_u32 s33, s33, 0x20000")
                emit_load(i // 8, i % 8)
            st["n"] += 1

        def need(i):
            if st["landed"] <= i:
                A(f"s_waitcnt vmcnt({st['n'] - 1 - i})"); st["landed"] = i + 1

        def qk(ch, c):
            A(f"v_mfma_f32_16x16x32_bf16 v[{vD+4*c}:{vD+4*c+3}], v[{reg(ch,c)}:{reg(ch,c)+3}], v[{vQ}:{vQ+3}], 0")

        def pv(ch, c):
            r = reg(ch, 4 + c)
            A(f"v_mfma_f32_16x16x16_bf16 v[{vO}:{vO+3}], v[{vP+2*c}:{vP+2*c+1}], v[{r}:{r+1}], v[{vO}:{vO+3}]")
            A(f"v_mfma_f32_16x16x16_bf16 v[{vO+4}:{vO+7}], v[{vP+2*c}:{vP+2*c+1}], v[{r+2}:{r+3}], v[{vO+4}:{vO+7}]")

        def scores():
            A("s_nop 5")
            for c in range(4):
                A(f"v_mov_b32_dpp v{vS+c}, v{vD+4*c} quad_perm:[0,0,0,0] row_mask:0xf bank_mask:0xf")
            for r in range(1, 4):
                for c in range(4):
                    A(f"v_add_f32_dpp v{vS+c}, v{vD+4*c+r}, v{vS+c} quad_perm:[{r},{r},{r},{r}] row_mask:0xf bank_mask:0xf")
            A(f"""
            v_max3_f32 v{vMX}, v{vS}, v{vS+1}, v{vS+2}
            v_max_f32 v{vMX}, v{vMX}, v{vS+3}
            v_mul_f32 v{vMX}, s42, v{vMX}
            """)

        def probs():
            for c in range(4): A(f"v_fma_f32 v{vS+c}, v{vS+c}, s42, -v{vM}")
            for c in range(4): A(f"v_exp_f32 v{vS+c}, v{vS+c}")
            for c in range(4): A(f"v_cvt_pk_bf16_f32 v{vP+2*c+1}, v{vS+c}, v{vS+c}")
            A(f"v_add_f32 v{vS}, v{vS}, v{vS+1}")
            A(f"v_add_f32 v{vS+2}, v{vS+2}, v{vS+3}")
            for c in range(4):
                A(f"v_and_b32 v{vP+2*c}, v{vP+2*c+1}, v{vMA}")
                A(f"v_and_b32 v{vP+2*c+1}, v{vP+2*c+1}, v{vMB}")
            A(f"v_add_f32 v{vL}, v{vL}, v{vS}")
            A(f"v_add_f32 v{vL}, v{vL}, v{vS+2}")

        def softmax(tag):
            scores()
            A(f"""
            v_cmp_gt_f32 vcc, v{vMX}, v{vM}
            s_cbranch_vccz L_keep{tag}
            s_call_b64 s[44:45], L_rescale
            L_keep{tag}:
            """)
            probs()

        def wavemax():
            A(f"""
            v_mov_b32 v{vT}, v{vMX}
            s_nop 1
            v_permlane16_swap_b32 v{vMX}, v{vT}
            s_nop 1
            v_max_f32 v{vMX}, v{vMX}, v{vT}
            v_mov_b32 v{vT}, v{vMX}
            s_nop 1
            v_permlane32_swap_b32 v{vMX}, v{vT}
            s_nop 1
            v_max3_f32 v{vMX}, v{vMX}, v{vT}, v{vM}
            """)

        def rescale():
            A(f"""
            v_sub_f32 v{vAL}, v{vM}, v{vMX}
            v_exp_f32 v{vAL}, v{vAL}
            v_mov_b32 v{vM}, v{vMX}
            v_mul_f32 v{vL}, v{vL}, v{vAL}
            s_nop 0
            """)
            for g in range(4):
                A(f"v_mov_b32_dpp v{vAO}, v{vAL} row_newbcast:{4*g} row_mask:{1<<g:#x} bank_mask:0xf")
                A("s_nop 1")
            for r in range(8): A(f"v_mul_f32 v{vO+r}, v{vO+r}, v{vAO}")

        A("@@HHEAD")
        A(f"""
        L_stream:
        v_and_b32 v6, 3, v1
        v_lshlrev_b32 v{vOK}, 4, v6
        v_bfe_u32 v7, v1, 2, 2
        v_lshl_add_u32 v{vOK}, v7, 8, v{vOK}
        v_lshrrev_b32 v7, 4, v1
        v_lshl_add_u32 v{vOK}, v7, 6, v{vOK}
        v_lshrrev_b32 v7, 3, v1
        v_lshlrev_b32 v7, 13, v7
        v_and_b32 v8, 7, v1
        v_lshl_add_u32 v7, v8, 4, v7
        s_sub_u32 s40, s20, 1
        s_lshl_b32 m0, s40, 12
        s_lshl_b32 s33, s55, 2
        s_add_u32 s33, s33, s40
        s_lshl_b32 s33, s33, 12
        s_lshl_b32 s40, s40, 18
        s_sub_u32 s38, 0x400000, s34
        s_mov_b32 s39, 0x20000
        s_lshl_b32 s35, s54, 22
        s_mov_b32 s26, 0x400000
        s_mov_b32 s30, 0x400000
        {"s_mov_b32 s82, 0" if self.prog else ""}
        {"v_mov_b32 v26, 0" if self.prog else ""}
        s_waitcnt lgkmcnt(0)
        s_add_u32 s36, s10, s34
        s_addc_u32 s37, s11, 0
        s_add_u32 s24, s6, s35
        s_addc_u32 s25, s7, 0
        s_add_u32 s28, s8, s35
        s_addc_u32 s29, s9, 0
        """)
        told = False
        if self.b0 == "first": A("s_barrier")
        for i in range(-4, 8 * DP):
            issue(WP)
            if st["landed"] >= 0 and not told:
                A(f"s_mov_b64 exec, 1\nds_write_b32 v{vP}, v{vP} offset:{LDS_WF}\ns_mov_b64 exec, -1"); told = True
            if i == WP - 5:
                bits = struct.unpack("<I", struct.pack("<f", math.log2(math.e) / math.sqrt(128.0)))[0]
                A(f"""
                v_mov_b32 v7, 0xffff
                v_mov_b32 v{vT}, 0xffff0000
                v_cmp_eq_u32 vcc, 0, v6
                v_cmp_eq_u32 s[46:47], 1, v6
                v_cmp_eq_u32 s[48:49], 2, v6
                v_cmp_eq_u32 s[50:51], 3, v6
                v_cndmask_b32 v{vMA}, 0, v7, vcc
                v_cndmask_b32 v{vMA}, v{vMA}, v{vT}, s[46:47]
                v_cndmask_b32 v{vMB}, 0, v7, s[48:49]
                v_cndmask_b32 v{vMB}, v{vMB}, v{vT}, s[50:51]
                v_mov_b32 v{vM}, 0xff7fffff
                v_mov_b32 v{vL}, 0
                """)
                for r in range(8): A(f"v_mov_b32 v{vO+r}, 0")
                A(f"s_mov_b32 s42, {bits:#x}")
                if self.stamps: A("s_mov_b32 s57, 0")
                A(f"s_lshl_b32 s40, s20, 2\ns_sub_u32 s40, s40, 4\nv_mov_b32 v{vP}, s40")
                if self.b0 != "first": A("s_barrier")
        self.stamp(1)
        A("s_branch L_stream2")
        A("@@HFRONT")
        A("L_rescale:")
        wavemax()
        rescale()
        A("s_setpc_b64 s[44:45]")
        A(f"""
        L_stream2:
        s_mov_b32 s43, 0
        L_waitq:
        ds_read_b128 v[{vQ}:{vQ+3}], v{vOV} offset:{LDS_Q}
        s_add_u32 s43, s43, 1
        s_waitcnt lgkmcnt(0)
        v_max3_u32 v{vT}, v{vQ}, v{vQ+1}, v{vQ+2}
        v_max_u32 v{vT}, v{vT}, v{vQ+3}
        v_cmp_eq_u32 vcc, -1, v{vT}
        s_cbranch_vccz L_haveq
        s_sleep 1
        s_cmp_lt_u32 s43, {SPIN_MAX * 16}
        s_cbranch_scc1 L_waitq
        L_haveq:
        """)
        self.stamp(2)
        target = 8 * C0 + W
        todo = target - st["n"]
        points, done = 2 * C0, 0
        def free_limit(ch, half):
            lim = st["n"]
            while lim < target:
                prev = lim // 8 - DP
                if prev < ch or (prev == ch and lim % 8 < 4 * half): lim += 1
                else: break
            return lim
        for ch in range(C0):
            if ch == self.split:
                A("s_branch L_stream3\n@@HMID\nL_stream3:")
            for half in (1, 2):
                for c in range(4):
                    need(8 * ch + 4 * (half - 1) + c)
                    (qk if half == 1 else pv)(ch, c)
                done += 1
                want = 8 * DP + self.FR + -(-(todo - self.FR) * done // points)
                lim = free_limit(ch, half)
                while st["n"] < min(want, lim): issue(W)
                if half == 1: softmax(f"p{ch}")
        assert st["n"] == target, (st, target)
        A(f"s_mov_b32 s43, {32 - C0}")
        if self.ms:
            spread = [0x00, 0x10, 0x11, 0x49, 0x55, 0x6d, 0x77, 0x7f, 0xff]
            enc = lambda n: spread[n] if n >= 0 else spread[-n] << 8
            if self.etab:
                assert not self.neg
                tb = sum((spread[n] | (e << 8)) << (16 * i) for i, (n, e) in enumerate(zip(self.table, self.etab)))
                enc = lambda n: spread[n] | (E << 8)
            else:
                tb = sum(enc(n) << (16 * i) for i, n in enumerate(self.table))
            mm = 0
            for m in self.ms: mm |= (1 << m) | (1 << (m - self.lagk)) | (1 << (m - self.lagk - 1))
            A(f"""
            s_mov_b32 s52, {enc(self.base)}
            s_mov_b32 s53, {mm:#x}
            s_mov_b32 s46, 0
            s_mov_b32 s41, {self.rk + 32}
            s_mul_i32 s35, s21, {CS}
            s_add_u32 s35, s35, {WS_CNT}
            s_add_u32 s48, s18, s35
            s_addc_u32 s49, s19, 0
            """)
            for i in range(4): A(f"s_mov_b32 s{84+i}, {(tb >> (32*i)) & 0xffffffff:#x}")

        def loop(label, w, until, ctl):
            A(f"{label}:")
            def iss(k):
                if k + w == 8: A("s_add_u32 s33, s33, 0x20000\ns_sub_u32 s43, s43, 1")
                emit_load(C0, (k + w) % 8)
            for k in range(8):
                if ctl:
                    A(f"s_bitcmp1_b32 s52, {k}\ns_cbranch_scc1 {label}_w{k}")
                    if self.neg and k in (0, 4):
                        A(f"s_bitcmp0_b32 s52, {k+8}\ns_cbranch_scc1 {label}_v{k}\ns_waitcnt vmcnt({w-2})\n{label}_v{k}:")
                    A(f"s_waitcnt vmcnt({w-1})\n{label}_w{k}:")
                    iss(k)
                    A(f"s_waitcnt vmcnt({w})")
                elif label == "L_loop" and ([0x00, 0x10, 0x11, 0x49, 0x55, 0x6d, 0x77, 0x7f, 0xff][self.w8] >> k) & 1:
                    iss(k)
                    A(f"s_waitcnt vmcnt({w})")
                else:
                    A(f"s_waitcnt vmcnt({w-1})")
                    if w < 8: iss(k)
                if k < 4: qk(C0, k)
                else: pv(C0, k - 4)
                if w == 8: iss(k)
                if k == 3: softmax(label)
            if ctl:
                A(f"s_bitcmp1_b32 s53, s43\ns_cbranch_scc0 {label}_m\ns_call_b64 s[44:45], L_rank\n{label}_m:")
            if ctl and self.etab:
                A(f"s_lshr_b32 s50, s52, 8\ns_cmp_gt_u32 s43, s50\ns_cbranch_scc1 {label}")
            else:
                A(f"s_cmp_lg_u32 s43, {until}\ns_cbranch_scc1 {label}")
        loop("L_loop", W, E, bool(self.ms))
        A("s_branch L_page2")
        if self.ms:
            A(f"""
            ; At a milestone wave 1 counts itself in among its seven peers (same a); how many were there first decides
            L_rank:
            s_add_u32 s46, s46, 1
            v_mov_b32 v{vT}, 0
            s_cmp_eq_u32 s46, 3
            s_cbranch_scc1 L_rank_take
            s_cmp_lg_u32 s20, 1
            s_cbranch_scc1 L_rank_ret
            s_cmp_eq_u32 s46, 2
            s_cbranch_scc1 L_rank_use
            s_mov_b32 s47, 1
            s_atomic_add s47, s[48:49], s41 glc
            s_add_u32 s41, s41, 4
            L_rank_ret:
            s_setpc_b64 s[44:45]
            L_rank_use:
            s_waitcnt lgkmcnt(0)
            s_and_b32 s47, s47, 7
            s_lshr_b32 m0, s47, 1
            s_lshl_b32 s47, s47, 4
            s_movrels_b32 s36, s84
            s_lshr_b32 s52, s36, s47
            s_and_b32 s52, s52, 0xffff
            v_mov_b32 v{vMX}, s52
            ds_write_b32 v{vT}, v{vMX} offset:{LDS_FLAG+8}
            s_setpc_b64 s[44:45]
            L_rank_take:
            ds_read_b32 v{vT}, v{vT} offset:{LDS_FLAG+8}
            s_mov_b32 s46, 0
            s_waitcnt lgkmcnt(0)
            v_readfirstlane_b32 s47, v{vT}
            s_cmp_eq_u32 s47, -1
            s_cselect_b32 s52, s52, s47
            s_setpc_b64 s[44:45]
            """)
        if self.align: A(".p2align 12")
        A("L_helper3:\ns_branch L_helper4")
        A("L_page2:")
        for k in range(W, W2): emit_load(C0, k)
        a0, a1, a2, a3, a4, a5, a6, a7 = range(RING, RING + 8)
        A(f"""
        s_sub_u32 s34, s20, 1
        v_lshrrev_b32 v6, 4, v1
        v_and_b32 v7, 15, v1
        v_lshlrev_b32 v{a0}, 9, v6
        v_lshl_add_u32 v{a0}, v7, 5, v{a0}
        s_lshl_b32 s35, s34, 11
        v_add_u32 v{a0}, s35, v{a0}
        s_lshl_b32 s41, s34, 2
        v_lshl_add_u32 v{a1}, v1, 2, s41
        v_and_b32 v{a2}, 12, v1
        v_lshlrev_b32 v{a2}, 2, v{a2}
        s_lshl_b32 s35, s34, 9
        v_lshl_add_u32 v{a3}, v1, 3, s35
        s_lshl_b32 s35, s34, 4
        v_mov_b32 v{a4}, s35
        s_lshl_b32 s35, s56, 10
        s_lshl_b32 s36, s34, 8
        s_add_u32 s35, s35, s36
        s_add_u32 s35, s35, {WS_P1}
        v_lshl_add_u32 v{a5}, v1, 2, s35
        s_lshl_b32 s35, s56, 4
        s_add_u32 s35, s35, s34
        s_lshl_b32 s35, s35, 3
        s_add_u32 s35, s35, {WS_ML}
        v_mov_b32 v{a6}, s35
        v_mov_b32 v{a7}, 0
        """)
        if self.etab:
            A("s_cmp_eq_u32 s43, 1\ns_cbranch_scc1 L_last")
            loop("L_loop2", W2, 1, False)
            A("L_last:")
        elif E > 1: loop("L_loop2", W2, 1, False)
        for k in range(4):
            if k == 0:
                A(f"s_waitcnt vmcnt({W2-1})")
                for k2 in range(W2, 8): emit_load(C0, k2)
            else: A(f"s_waitcnt vmcnt({7-k})")
            qk(C0, k)
        scores()
        wavemax()
        A(f"""
        s_mov_b64 exec, 0x1111
        ds_write_b32 v{a1}, v{vMX} offset:{LDS_ML}
        s_mov_b64 exec, -1
        s_waitcnt lgkmcnt(0)
        s_barrier
        ds_read_b128 v[28:31], v{a2} offset:{LDS_ML}
        ds_read_b32 v{a7}, v{a7} offset:{LDS_FLAG+4}
        s_waitcnt lgkmcnt(1)
        v_max3_f32 v{vMX}, v28, v29, v30
        v_max_f32 v{vMX}, v{vMX}, v31
        """)
        rescale()
        probs()
        A(f"""
        v_mov_b32 v{vT}, v{vL}
        v_readlane_b32 s36, v{vM}, s41
        s_waitcnt lgkmcnt(0)
        v_permlane16_swap_b32 v{vL}, v{vT}
        v_cmp_eq_u32 vcc, 1, v{a7}
        s_min_u32 s36, s36, -2
        v_add_f32 v{vL}, v{vL}, v{vT}
        v_mov_b32 v{vT}, v{vL}
        v_mov_b32 v44, s36
        s_nop 0
        v_permlane32_swap_b32 v{vL}, v{vT}
        s_nop 0
        v_add_f32 v{vL}, v{vL}, v{vT}
        s_mov_b64 exec, 0x1111
        ds_write_b32 v{a1}, v{vL} offset:{LDS_ML+64}
        s_mov_b64 exec, -1
        """)
        for c in range(4):
            A(f"s_waitcnt vmcnt({3-c})")
            pv(C0, c)
        self.stamp(3)
        A(f"""
        s_nop 6
        ds_write_b128 v{a0}, v[{vO}:{vO+3}] offset:{LDS_O}
        ds_write_b128 v{a0}, v[{vO+4}:{vO+7}] offset:{LDS_O+16}
        s_waitcnt lgkmcnt(0)
        s_barrier
        ds_read_b64 v[36:37], v{a3} offset:{LDS_O}
        ds_read_b64 v[38:39], v{a3} offset:{LDS_O+2048}
        ds_read_b64 v[40:41], v{a3} offset:{LDS_O+4096}
        ds_read_b64 v[42:43], v{a3} offset:{LDS_O+6144}
        ds_read_b128 v[32:35], v{a4} offset:{LDS_ML+64}
        s_waitcnt lgkmcnt(3)
        v_add_f32 v36, v36, v38
        v_add_f32 v37, v37, v39
        s_waitcnt lgkmcnt(1)
        v_add_f32 v40, v40, v42
        v_add_f32 v41, v41, v43
        v_add_f32 v36, v36, v40
        v_add_f32 v37, v37, v41
        v_cvt_pk_bf16_f32 v48, v36, v37
        s_waitcnt lgkmcnt(0)
        v_min_u32 v48, -2, v48
        v_add_f32 v32, v32, v33
        v_add_f32 v34, v34, v35
        v_mov_b32_dpp v49, v48 quad_perm:[1,1,1,1] row_mask:0xf bank_mask:0xf
        v_mov_b32_dpp v50, v48 quad_perm:[2,2,2,2] row_mask:0xf bank_mask:0xf
        v_mov_b32_dpp v51, v48 quad_perm:[3,3,3,3] row_mask:0xf bank_mask:0xf
        v_add_f32 v45, v32, v34
        s_mov_b32 exec_lo, 0x11111111
        s_mov_b32 exec_hi, 0x11111111
        v_min_u32 v45, -2, v45
        s_cbranch_vccz L_pub_far
        global_store_dwordx4 v{a5}, v[48:51], s[18:19]
        s_mov_b64 exec, 1
        global_store_dwordx2 v{a6}, v[44:45], s[18:19]
        {"s_branch L_pub_done" if self.stamps else "s_endpgm"}
        L_pub_far:
        global_store_dwordx4 v{a5}, v[48:51], s[18:19] sc1
        s_mov_b64 exec, 1
        global_store_dwordx2 v{a6}, v[44:45], s[18:19] sc1
        L_pub_done:
        """)
        self.stamp(4)
        if self.prog:
            A(f"s_mov_b64 exec, -1\ns_lshl_b32 s58, s2, 2\ns_add_u32 s58, s58, s20\ns_sub_u32 s58, s58, 1\ns_lshl_b32 s58, s58, 8\ns_add_u32 s58, s58, {WS_STAMP + 0x100000}")
            A("v_lshl_add_u32 v2, v1, 2, s58\nglobal_store_dword v2, v26, s[18:19]")
        self.stamp_out(5)
        A("s_endpgm")

    def nibble_sum(self, d, s, t):
        self.A(f"""
        v_and_b32 v{d}, 0x0f0f0f0f, v{s}
        v_lshrrev_b32 v{t}, 4, v{s}
        v_and_b32 v{t}, 0x0f0f0f0f, v{t}
        v_add_u32 v{d}, v{d}, v{t}
        v_sad_u8 v{d}, v{d}, 0, 0
        """)

    def helper(self):
        A, wpol = self.A, self.wpol
        WR, XR, QA = 32, 96, 112
        A("@@BEGIN_HHEAD")
        A(f"""
        s_setprio 3
        v_mov_b32 v8, -1
        v_mov_b32 v9, -1
        v_mov_b32 v10, -1
        v_mov_b32 v11, -1
        v_mov_b32 v5, 0
        ds_write_b128 v3, v[8:11] offset:{LDS_Q}
        ds_write_b128 v5, v[8:11] offset:{LDS_FLAG}
        ds_write_b128 v5, v[8:11] offset:{LDS_WF}
        s_mul_i32 s52, s54, {CS}
        s_add_u32 s52, s52, {WS_CNT}
        v_lshrrev_b32 v6, 4, v1
        v_and_b32 v14, 3, v1
        v_lshlrev_b32 v4, 10, v14
        v_lshl_add_u32 v4, v6, 4, v4
        s_lshl_b32 s35, s53, 8
        v_add_u32 v4, s35, v4
        v_and_b32 v7, 8, v1
        v_lshl_add_u32 v7, v7, {3 if self.rk == 256 else 2}, v1
        v_lshl_add_u32 v7, v7, 2, s52
        s_cmp_lg_u32 s55, 0
        s_waitcnt lgkmcnt(0)
        s_cbranch_scc1 L_noclear
        s_mov_b64 exec, {0xff03 if self.ms else 3:#x}
        global_store_dword v7, v5, s[18:19] sc1
        s_mov_b64 exec, -1
        L_noclear:
        s_barrier
        """)
        for t in range(4):
            A(f"global_load_dwordx4 v[{XR+4*t}:{XR+4*t+3}], v4, s[4:5] offset:{64*t}")
        A("s_branch L_helper1\n@@END\n@@BEGIN_HFRONT")
        A(f"""
        L_helper1:
        s_getpc_b64 s[36:37]
        L_pc:
        s_sub_u32 s36, s36, L_pc-{NAME}
        s_subb_u32 s37, s37, 0
        v_lshl_add_u32 v4, v1, 5, s21
        v_lshlrev_b32 v4, 7, v4
        v_min_u32 v4, L_code_end-{NAME}-4, v4
        s_mov_b64 exec, 7
        global_load_dword v25, v4, s[36:37]
        s_mov_b64 exec, -1
        s_lshl_b32 s35, s22, 5
        v_lshlrev_b32 v22, 5, v1
        s_cmp_lg_u32 s55, 0
        s_cbranch_scc1 L_nosig
        s_add_u32 s46, s16, s35
        s_addc_u32 s47, s17, 0
        s_mov_b32 s48, 1
        s_waitcnt vmcnt(5)
        s_atomic_add s48, s[46:47], 0x0
        L_nosig:
        v_and_b32 v7, 15, v1
        v_lshrrev_b32 v13, 2, v7
        v_lshrrev_b32 v2, 3, v1
        v_and_b32 v4, 7, v1
        v_lshlrev_b32 v4, 4, v4
        v_lshl_add_u32 v2, v2, 10, v4
        s_mul_i32 s41, s22, {CS}
        s_add_u32 s41, s41, {WS_CNT}
        v_mul_u32_u24 v30, {8*CS}, v1
        v_add_u32 v30, s41, v30
        v_lshlrev_b32 v15, 16, v14
        v_lshl_add_u32 v15, v13, 6, v15
        v_lshl_add_u32 v15, v6, 4, v15
        s_lshl_b32 s35, s22, 13
        s_lshl_b32 s41, s21, 8
        s_add_u32 s35, s35, s41
        v_add_u32 v15, s35, v15
        v_lshlrev_b32 v23, 5, v14
        v_lshl_add_u32 v23, v13, 9, v23
        v_lshl_add_u32 v23, v6, 7, v23
        s_lshl_b32 s35, s54, 13
        v_add_u32 v23, s35, v23
        v_add_u32 v29, 0x1000, v23
        v_lshl_add_u32 v13, v6, 3, v13
        v_lshlrev_b32 v13, 7, v13
        v_lshl_add_u32 v13, v14, 3, v13
        s_lshl_b32 s35, s56, 10
        s_add_u32 s35, s35, {WS_P1}
        v_add_u32 v20, s35, v3
        s_lshl_b32 s35, s56, 7
        s_add_u32 s35, s35, {WS_ML}
        v_add_u32 v21, s35, v3
        s_and_b32 s38, s21, 3
        s_lshl_b32 s39, s22, 2
        s_add_u32 s38, s38, s39
        s_lshr_b32 s39, s21, 2
        s_lshl_b32 s35, s38, 3
        s_add_u32 s35, s35, s39
        s_lshl_b32 s35, s35, 10
        s_add_u32 s35, s35, {WS_P2}
        v_add_u32 v12, s35, v3
        s_mov_b32 s49, 0
        L_waitw:
        ds_read_b128 v[16:19], v5 offset:{LDS_WF}
        s_add_u32 s49, s49, 1
        s_waitcnt lgkmcnt(0)
        v_max3_u32 v16, v16, v17, v18
        v_max_u32 v16, v16, v19
        v_cmp_eq_u32 vcc, -1, v16
        s_cbranch_vccz L_havew
        s_cmp_lt_u32 s49, {SPIN_MAX * 16}
        s_cbranch_scc1 L_waitw
        L_havew:
        s_mov_b64 exec, 0xff
        global_load_dword v24, v22, s[16:17] sc1
        s_mov_b64 exec, -1
        s_waitcnt vmcnt(2)
        """)
        self.stamp(1)
        def rd(k):
            t, nt = k // 4, k % 4
            r = WR + 4 * k
            A(f"ds_read_b64_tr_b16 v[{r}:{r+1}], v13 offset:{LDS_W + t*4096 + nt*32}")
            A(f"ds_read_b64_tr_b16 v[{r+2}:{r+3}], v13 offset:{LDS_W + t*4096 + nt*32 + 512}")
        for k in range(6): rd(k)
        for k in range(16):
            t, nt = k // 4, k % 4
            A(f"s_waitcnt lgkmcnt({2*min(5, 15-k)})")
            c = QA + 4 * nt
            A(f"v_mfma_f32_16x16x32_bf16 v[{c}:{c+3}], v[{WR+4*k}:{WR+4*k+3}], v[{XR+4*t}:{XR+4*t+3}], {'0' if t == 0 else f'v[{c}:{c+3}]'}")
            if k + 6 < 16: rd(k + 6)
        A("s_nop 5")
        for nt in range(1, 4):
            for r in range(4):
                A(f"v_mov_b32_dpp v{QA+r}, v{QA+4*nt+r} quad_perm:[0,1,2,3] row_mask:0xf bank_mask:{1<<nt:#x}")
        A(f"global_store_dwordx4 v15, v[{QA}:{QA+3}], s[18:19]")
        self.stamp(2)
        A(f"""
        global_store_dwordx4 v12, v[8:11], s[18:19] sc1
        global_store_dwordx4 v20, v[8:11], s[18:19]
        s_mov_b64 exec, 0xff
        global_store_dwordx4 v21, v[8:11], s[18:19]
        s_getreg_b32 s59, hwreg(HW_REG_XCC_ID, 0, 3)
        s_lshl_b32 s59, s59, 2
        s_lshl_b32 s48, 1, s59
        s_add_u32 s46, s18, s52
        s_addc_u32 s47, s19, 0
        s_mov_b32 s49, 0
        s_branch L_chkflag
        L_pollflag:
        s_sleep {self.fsleep}
        global_load_dword v24, v22, s[16:17] sc1
        L_chkflag:
        s_add_u32 s49, s49, 1
        s_waitcnt vmcnt(0)
        v_cmp_gt_u32 vcc, 4, v24
        s_cbranch_vccz L_gotflag
        s_cmp_lt_u32 s49, {SPIN_MAX}
        s_cbranch_scc1 L_pollflag
        L_gotflag:
        s_atomic_add s48, s[46:47], 0x0
        s_mov_b64 exec, -1
        s_lshl_b32 s35, s38, 17
        s_lshl_b32 s41, s39, 7
        s_add_u32 s35, s35, s41
        s_add_u32 s24, s12, s35
        s_addc_u32 s25, s13, 0
        s_sub_u32 s26, 0x400000, s35
        s_mov_b32 m0, {LDS_W}
        s_mov_b32 s33, 0
        """)
        for i in range(self.wofirst):
            A(f"""
            buffer_load_dwordx4 v2, s[24:27], s33 offen {wpol} lds
            s_add_u32 m0, m0, 0x400
            s_add_u32 s33, s33, 0x2000
            s_waitcnt vmcnt(0)
            """)
        A(f"""
        s_mov_b64 exec, 15
        s_mov_b32 s49, 0
        s_branch L_pollq1
        L_pollq:
        s_sleep {self.csleep}
        L_pollq1:
        global_load_dword v24, v30, s[18:19] sc1
        s_add_u32 s49, s49, 1
        s_waitcnt vmcnt(0)
        """)
        self.nibble_sum(25, 24, 26)
        A(f"""
        v_cmp_ne_u32 vcc, 8, v25
        s_cbranch_vccz L_gotq
        s_cmp_lt_u32 s49, {SPIN_MAX}
        s_cbranch_scc1 L_pollq
        L_gotq:
        s_lshl_b32 s48, 8, s59
        v_cmp_ne_u32 vcc, s48, v24
        s_mov_b32 s59, 1
        s_mov_b64 exec, -1
        {"s_cbranch_vccz L_near" if not self.forcefar else ""}
        s_mov_b32 s59, 0
        global_store_dwordx4 v15, v[{QA}:{QA+3}], s[18:19] sc1
        global_store_dwordx4 v20, v[8:11], s[18:19] sc1
        s_mov_b64 exec, 0xff
        global_store_dwordx4 v21, v[8:11], s[18:19] sc1
        s_mov_b64 exec, 15
        s_mov_b32 s48, 1
        s_waitcnt vmcnt(0)
        s_atomic_add s48, s[46:47], 0x4
        L_pollq2:
        s_sleep 32
        global_load_dword v24, v30, s[18:19] offset:4 sc1
        s_add_u32 s49, s49, 1
        s_waitcnt vmcnt(0)
        v_cmp_ne_u32 vcc, 8, v24
        s_cbranch_vccz L_gotq2
        s_cmp_lt_u32 s49, {SPIN_MAX}
        s_cbranch_scc1 L_pollq2
        L_gotq2:
        s_mov_b64 exec, -1
        L_near:
        """)
        for kq in range(4):
            for e in range(2):
                r = WR + 8 * kq + 4 * e
                A(f"global_load_dwordx4 v[{r}:{r+3}], v{23 if kq < 2 else 29}, s[18:19] offset:{(kq % 2) * 2048 + 16 * e} sc1")
        A("s_waitcnt vmcnt(4)")
        for j in range(8): A(f"v_add_f32 v{WR+j}, v{WR+j}, v{WR+8+j}")
        A("s_waitcnt vmcnt(0)")
        for j in range(8): A(f"v_add_f32 v{WR+16+j}, v{WR+16+j}, v{WR+24+j}")
        for j in range(8): A(f"v_add_f32 v{WR+j}, v{WR+j}, v{WR+16+j}")
        for j in range(4): A(f"v_cvt_pk_bf16_f32 v{24+j}, v{WR+2*j}, v{WR+2*j+1}")
        for j in range(4): A(f"v_min_u32 v{24+j}, -2, v{24+j}")
        A(f"ds_write_b128 v3, v[24:27] offset:{LDS_Q}")
        self.stamp(3)
        if self.stamps: A("s_mov_b32 s57, s49")
        A("s_branch L_helper2\n@@END\n@@BEGIN_HMID")
        if self.align: A(".p2align 12")
        A("L_helper2:")
        self.stamp(4)
        A(f"""
        L_wo:
        s_waitcnt vmcnt({self.wopace})
        buffer_load_dwordx4 v2, s[24:27], s33 offen {wpol} lds
        s_add_u32 m0, m0, 0x400
        s_add_u32 s33, s33, 0x2000
        s_cmp_lt_u32 s33, 0x20000
        s_cbranch_scc1 L_wo
        ; wait for all first reports: every output partial slot is empty
        v_mul_u32_u24 v22, {CS}, v1
        v_add_u32 v22, {WS_CNT}, v22
        s_mov_b32 s49, 0
        s_mov_b32 exec_hi, 0
        L_pollall:
        global_load_dword v24, v22, s[18:19] sc1
        s_add_u32 s49, s49, 1
        s_waitcnt vmcnt(0)
        """)
        self.nibble_sum(25, 24, 26)
        A(f"""
        v_cmp_ne_u32 vcc, 8, v25
        s_cbranch_vccz L_gotall
        s_sleep 32
        s_cmp_lt_u32 s49, {SPIN_MAX}
        s_cbranch_scc1 L_pollall
        L_gotall:
        s_mov_b64 exec, -1
        v_mov_b32 v25, s59
        ds_write_b32 v5, v25 offset:{LDS_FLAG+4}
        s_cmp_eq_u32 s39, s22
        s_cselect_b32 s59, s59, 0
        s_and_b32 s41, s38, 3
        v_lshrrev_b32 v15, 2, v7
        v_lshlrev_b32 v15, 16, v15
        v_lshl_add_u32 v15, v14, 10, v15
        v_lshl_add_u32 v15, v6, 4, v15
        s_lshl_b32 s35, s22, 13
        s_lshl_b32 s50, s41, 8
        s_add_u32 s35, s35, s50
        s_add_u32 s35, s35, {WS_P1}
        v_add_u32 v15, s35, v15
        v_add_u32 v16, 0x1000, v15
        v_and_b32 v17, 7, v1
        v_lshlrev_b32 v17, 7, v17
        v_lshl_add_u32 v17, v6, 13, v17
        s_lshl_b32 s35, s22, 10
        s_lshl_b32 s50, s41, 3
        s_add_u32 s35, s35, s50
        s_add_u32 s35, s35, {WS_ML}
        v_add_u32 v17, s35, v17
        v_lshrrev_b32 v18, 1, v1
        v_lshlrev_b32 v18, 13, v18
        v_and_b32 v19, 1, v1
        v_lshl_add_u32 v18, v19, 4, v18
        s_lshl_b32 s35, s22, 10
        s_lshl_b32 s50, s21, 5
        s_add_u32 s35, s35, s50
        s_add_u32 s35, s35, {WS_P2}
        v_add_u32 v18, s35, v18
        v_and_b32 v19, 1, v6
        v_lshlrev_b32 v19, 6, v19
        v_lshrrev_b32 v20, 1, v6
        v_lshl_add_u32 v19, v20, 5, v19
        s_lshr_b32 s35, s21, 3
        s_lshl_b32 s35, s35, 10
        s_lshl_b32 s50, s22, 7
        s_add_u32 s35, s35, s50
        s_lshl_b32 s50, s55, 2
        s_add_u32 s35, s35, s50
        v_add_u32 v19, s35, v19
        """)
        BR, AR, CR = 32, 96, 128
        for t in range(4):
            for nt in range(4): rd(4 * t + nt)
            A("s_waitcnt lgkmcnt(0)")
        A("s_mov_b32 s49, 0\ns_waitcnt lgkmcnt(0)\ns_branch L_helper3\n@@END\n@@BEGIN_HTAIL")
        def poll1_loads():
            A("global_load_dwordx2 v[20:21], v17, s[18:19] sc1")
            for u in range(2):
                for t in range(4):
                    r = AR + 16 * u + 4 * t
                    A(f"global_load_dwordx4 v[{r}:{r+3}], v{15+u}, s[18:19] offset:{64*t} sc1")
        A("L_helper4:\ns_barrier")
        if self.nopoll:
            A("s_barrier")
            for i in range(5, 10): self.stamp(i)
            self.stamp_out(10)
            A("s_endpgm")
        poll1_loads()
        A("s_barrier")
        self.stamp(5)
        A("s_branch L_chk1\nL_poll1:")
        if self.t1: A(f"s_sleep {self.t1}")
        poll1_loads()
        A("L_chk1:\ns_add_u32 s49, s49, 1\ns_waitcnt vmcnt(8)\nv_max_u32 v22, v20, v21")
        for k in range(8):
            r = AR + 4 * k
            A(f"s_waitcnt vmcnt({7-k})")
            A(f"v_max3_u32 v22, v22, v{r}, v{r+1}")
            A(f"v_max3_u32 v22, v22, v{r+2}, v{r+3}")
        A(f"""
        v_cmp_eq_u32 vcc, -1, v22
        s_cmp_ge_u32 s49, {SPIN_MAX}
        s_cbranch_scc1 L_got1
        s_and_b64 exec, exec, vcc
        s_cbranch_scc1 L_poll1
        L_got1:
        s_mov_b64 exec, -1
        """)
        self.stamp(6)
        wl = [
            "v_max_f32_dpp v22, v20, v20 row_ror:1 row_mask:0xf bank_mask:0xf",
            "v_max_f32_dpp v22, v22, v22 row_ror:2 row_mask:0xf bank_mask:0xf",
            "v_max_f32_dpp v22, v22, v22 row_ror:4 row_mask:0xf bank_mask:0xf",
            "v_sub_f32 v22, v20, v22",
            "v_exp_f32 v22, v22",
            "v_mul_f32 v23, v22, v21",
            "v_add_f32_dpp v23, v23, v23 row_ror:1 row_mask:0xf bank_mask:0xf",
            "v_add_f32_dpp v23, v23, v23 row_ror:2 row_mask:0xf bank_mask:0xf",
            "v_add_f32_dpp v23, v23, v23 row_ror:4 row_mask:0xf bank_mask:0xf",
            "v_rcp_f32 v23, v23",
            "v_mul_f32 v22, v22, v23",
        ]
        def fm(u, r, nt):
            c = CR + 16 * u + 4 * nt + r
            op = "v_mul_f32_dpp" if (u == 0 and r == 0) else "v_fmac_f32_dpp"
            return f"{op} v{24+nt}, v22, v{c} row_newbcast:{4*u+r} row_mask:0xf bank_mask:0xf"
        f0 = [fm(0, r, nt) for r in range(4) for nt in range(4)]
        k = 0
        for u in range(2):
            for t in range(4):
                for nt in range(4):
                    a, b, c = AR + 16 * u + 4 * t, BR + 16 * t + 4 * nt, CR + 16 * u + 4 * nt
                    A(f"v_mfma_f32_16x16x32_bf16 v[{c}:{c+3}], v[{a}:{a+3}], v[{b}:{b+3}], {'0' if t == 0 else f'v[{c}:{c+3}]'}")
                    k += 1
                    if wl: A(wl.pop(0) + "\ns_nop 0")
                    elif k >= 24 and f0:
                        A(f0.pop(0)); A(f0.pop(0))
        assert not wl
        for x in f0: A(x)
        A("s_nop 4")
        for r in range(4):
            for nt in range(4): A(fm(1, r, nt))
        A("s_cmp_eq_u32 s59, 1\ns_mov_b32 s49, 0")
        for nt in range(4): A(f"v_min_u32 v{24+nt}, -2, v{24+nt}")
        A(f"""
        s_cbranch_scc1 L_p2_near
        global_store_dwordx4 v12, v[24:27], s[18:19] sc1
        s_branch L_p2_done
        L_p2_near:
        global_store_dwordx4 v12, v[24:27], s[18:19]
        L_p2_done:
        """)
        self.stamp(7)
        if self.p2depth == 1:
            A(f"""
            s_branch L_poll2a
            L_poll2:
            {"s_sleep %d" % self.t2 if self.t2 else ""}
            L_poll2a:
            global_load_dwordx4 v[28:31], v18, s[18:19] sc1
            s_add_u32 s49, s49, 1
            s_waitcnt vmcnt(0)
            v_max3_u32 v22, v28, v29, v30
            v_max_u32 v22, v22, v31
            v_cmp_eq_u32 vcc, -1, v22
            s_cmp_ge_u32 s49, {SPIN_MAX}
            s_cbranch_scc1 L_got2
            s_and_b64 exec, exec, vcc
            s_cbranch_scc1 L_poll2
            L_got2:
            s_mov_b64 exec, -1
            """)
        else:
            A(f"""
            global_load_dwordx4 v[28:31], v18, s[18:19] sc1
            L_poll2:
            global_load_dwordx4 v[32:35], v18, s[18:19] sc1
            s_add_u32 s49, s49, 1
            s_waitcnt vmcnt(1)
            v_max3_u32 v22, v28, v29, v30
            v_max_u32 v22, v22, v31
            v_cmp_eq_u32 vcc, -1, v22
            s_cbranch_vccz L_got2
            global_load_dwordx4 v[28:31], v18, s[18:19] sc1
            s_waitcnt vmcnt(1)
            v_max3_u32 v22, v32, v33, v34
            v_max_u32 v22, v22, v35
            v_cmp_eq_u32 vcc, -1, v22
            s_cmp_lt_u32 s49, {SPIN_MAX}
            s_cbranch_vccz L_got2b
            s_cbranch_scc1 L_poll2
            L_got2b:
            v_mov_b32 v36, v32
            v_mov_b32 v37, v33
            v_mov_b32 v38, v34
            v_mov_b32 v39, v35
            s_branch L_sum2
            L_got2:
            v_mov_b32 v36, v28
            v_mov_b32 v37, v29
            v_mov_b32 v38, v30
            v_mov_b32 v39, v31
            L_sum2:
            s_nop 0
            """)
        self.stamp(8)
        z = 28 if self.p2depth == 1 else 36
        A(f"""
        v_permlane32_swap_b32 v{z}, v{z+1}
        v_permlane32_swap_b32 v{z+2}, v{z+3}
        s_nop 1
        v_add_f32 v{z}, v{z}, v{z+1}
        v_add_f32 v{z+2}, v{z+2}, v{z+3}
        s_nop 1
        v_permlane16_swap_b32 v{z}, v{z+2}
        s_nop 1
        v_add_f32 v{z}, v{z}, v{z+2}
        s_nop 1
        v_add_f32_dpp v{z}, v{z}, v{z} row_ror:2 row_mask:0xf bank_mask:0xf
        s_nop 1
        v_add_f32_dpp v{z}, v{z}, v{z} row_ror:4 row_mask:0xf bank_mask:0xf
        s_nop 1
        v_add_f32_dpp v{z}, v{z}, v{z} row_ror:8 row_mask:0xf bank_mask:0xf
        s_nop 1
        v_mov_b32_dpp v{z+1}, v{z} quad_perm:[1,1,1,1] row_mask:0xf bank_mask:0xf
        s_mov_b32 exec_lo, 0x00010001
        s_mov_b32 exec_hi, 0x00010001
        v_cvt_pk_bf16_f32 v{z}, v{z}, v{z+1}
        global_store_dword v19, v{z}, s[14:15]
        """)
        self.stamp(9)
        self.stamp_out(10)
        A("L_end:\ns_endpgm\n@@END")

    def build(self):
        A = self.A
        self.L.append(HEADER.rstrip("\n"))
        self.L.append(f"; @launch grid=(256,1,1) block=(320,1,1) lds={LDS_SIZE}")
        A('.amdgcn_target "amdgcn-amd-amdhsa--gfx950"')
        A(".text")
        if self.align:
            self.L.append("; unreached padding: puts the entry at the start of a 4 KiB page (instruction prefetch stops at page ends)")
            A(".p2align 12\n.fill 832, 4, 0xbf810000")
        A(f".globl {NAME}\n.p2align 8\n.type {NAME},@function\n{NAME}:")
        A("""
        s_cmp_ge_u32 s2, 256
        s_cbranch_scc1 L_end
        s_load_dwordx16 s[4:19], s[0:1], 0
        """)
        self.stamp(0)
        A("""
        v_lshrrev_b32 v2, 6, v0
        v_and_b32 v1, 63, v0
        s_lshr_b32 s21, s2, 3
        v_readfirstlane_b32 s20, v2
        s_and_b32 s22, s2, 7
        v_lshlrev_b32 v3, 4, v1
        s_mov_b32 s27, 0x20000
        s_mov_b32 s31, 0x20000
        s_and_b32 s54, s21, 24
        s_add_u32 s54, s54, s22
        s_and_b32 s55, s21, 7
        s_lshl_b32 s56, s54, 3
        s_add_u32 s56, s56, s55
        s_lshr_b32 s53, s21, 3
        s_lshl_b32 s34, s53, 20
        s_lshl_b32 s35, s22, 10
        s_add_u32 s34, s34, s35
        s_lshl_b32 s35, s55, 7
        s_add_u32 s34, s34, s35
        s_cmp_lg_u32 s20, 0
        s_cbranch_scc1 L_stream
        """)
        head = self.L
        self.L = []; self.streamer(); st = self.L
        self.L = []; self.helper(); hl = self.L
        parts, cur = {}, None
        for line in hl:
            t = line.strip()
            if t.startswith("@@BEGIN_"): cur = t[8:]; parts[cur] = []
            elif t == "@@END": cur = None
            else: parts[cur].append(line)
        self.L = head
        for line in st:
            t = line.strip()
            if t.startswith("@@"): self.L += parts.pop(t[2:])
            else: self.L.append(line)
        self.L += parts.pop("HTAIL")
        assert not parts
        A("L_code_end:")
        nv = max(self.nv_stream, 160)
        A(f""".section .rodata,"a"
.p2align 6
.amdhsa_kernel {NAME}
  .amdhsa_next_free_vgpr {nv}
  .amdhsa_next_free_sgpr 96
  .amdhsa_accum_offset {(nv + 3) // 4 * 4}
  .amdhsa_group_segment_fixed_size 0
  .amdhsa_kernarg_size 64
  .amdhsa_user_sgpr_count 2
  .amdhsa_user_sgpr_kernarg_segment_ptr 1
  .amdhsa_system_sgpr_workgroup_id_x 1
  .amdhsa_float_denorm_mode_32 3
.end_amdhsa_kernel""")
        return "\n".join(self.L) + "\n"


if __name__ == "__main__":
    out = sys.argv[1] if len(sys.argv) > 1 else "standalone__gqa_block_cached__decode.s"
    kw = eval("dict(" + (sys.argv[2] if len(sys.argv) > 2 else "") + ")")
    open(out, "w").write(Gen(**kw).build())
```

```python
import sys, math, struct

NAME = "standalone__gqa_block_cached__decode_kernel"
HEADER = """; Kernarg layout for this problem (64 bytes, ptrs only, base s[0:1]):
;   offset  48: d_debug   256 bytes (zero at entry: first counters)
;
"""

WS_Q, WS_P1, WS_ML, WS_P2, WS_CNT, WS_STAMP = 0x0, 0x40000, 0x80000, 0x90000, 0xd0000, 0x200000
CS = 4352
LDS_W, LDS_Q, LDS_O, LDS_ML, LDS_FLAG, LDS_WF, LDS_SIZE = 0, 16384, 17408, 25600, 25728, 25744, 25760
SPIN_MAX = 40000


class Gen:
    def __init__(self, DP=5, EX=2, FR=3, W=5, WP=5, E=3, W2=7, pol="nt", wpol="nt", fsleep=16, csleep=24,
                 wofirst=2, wopace=1, ms=(), table=(0, 0, 0, 0, 1, 2, 4, 8), base=0, lagk=2, b0="first", neg=False, rk=256, w8=0, etab=None, t1=0, t2=0, nopoll=False, clean=False, cleanq=False, nre=3, vtouch=False, jitter=0,
                 split=2, align=True, forcefar=False, p2depth=1, stamps=False, prog=False):
        self.__dict__.update(locals())
        self.L = []

    def A(self, s):
        for line in s.strip("\n").split("\n"):
            line = line.strip()
            if not line:
                continue
            self.L.append(line if line.endswith(":") or line.startswith(".") else "    " + line)

    def stamp(self, idx):
        if self.stamps:
            self.A(f"s_memrealtime s[{60+2*idx}:{61+2*idx}]")

    def jit(self, k):
        if self.jitter:
            self.jn = getattr(self, "jn", 0) + 1
            mul = [0x9E3779B1, 0x85EBCA77, 0xC2B2AE3D, 0x27D4EB2F, 0x165667B1, 0xD3A2646D, 0xFD7046C5, 0xB55A4F09][(k + self.jitter) % 8]
            self.A(f"""
            s_add_u32 s94, s2, {17 * self.jitter + k}
            s_mul_i32 s94, s94, {mul:#x}
            s_lshr_b32 s94, s94, 28
            s_cmp_lt_u32 s94, 12
            s_cbranch_scc1 L_j{self.jn}
            s_sub_u32 s94, s94, 11
            s_lshl_b32 s94, s94, 2
            L_jl{self.jn}:
            s_sleep 127
            s_sub_u32 s94, s94, 1
            s_cmp_lg_u32 s94, 0
            s_cbranch_scc1 L_jl{self.jn}
            L_j{self.jn}:
            """)

    def progstamp(self):
        if self.prog:
            self.A("s_memrealtime s[80:81]\ns_mov_b32 m0, s82\ns_add_u32 s82, s82, 1\ns_waitcnt lgkmcnt(0)\nv_writelane_b32 v26, s80, m0")

    def stamp_out(self, n):
        if not self.stamps:
            return
        A = self.A
        A("s_waitcnt lgkmcnt(0)")
        A("s_mov_b64 exec, 1")
        A(f"s_mul_i32 s58, s56, 5\ns_add_u32 s58, s58, s20\ns_lshl_b32 s58, s58, 6\ns_add_u32 s58, s58, {WS_STAMP}")
        A("v_mov_b32 v1, s58")
        for i in range(n):
            A(f"v_mov_b32 v2, s{60+2*i}\nglobal_store_dword v1, v2, s[18:19] offset:{4*i}")
        A("v_mov_b32 v2, s57\nglobal_store_dword v1, v2, s[18:19] offset:56")
        A("s_getreg_b32 s58, hwreg(HW_REG_XCC_ID)\nv_mov_b32 v2, s58\nglobal_store_dword v1, v2, s[18:19] offset:60")

    def streamer(self):
        A, DP, EX, W, WP, E, W2, pol = self.A, self.DP, self.EX, self.W, self.WP, self.E, self.W2, self.pol
        vOK, vOV, vMA, vMB = 2, 3, 4, 5
        vQ, vO = 8, 12
        vM, vL, vMX, vT, vAL, vAO = 20, 21, 22, 23, 24, 25
        vD, vS, vP, RING = 28, 44, 48, 56
        self.nv_stream = RING + 32 * DP
        C0 = DP + EX
        assert EX >= 1 and E >= 1

        def slot(ch): return ch if ch < DP else min(ch, C0) - DP
        def reg(ch, k): return RING + 32 * slot(ch) + 4 * k
        st = dict(n=-4, landed=-4)

        def emit_load(ch, k):
            r = reg(ch, k)
            if k < 4: A(f"buffer_load_dwordx4 v[{r}:{r+3}], v{vOK}, s[24:27], s33 offen offset:{k*1024} {pol}")
            else: A(f"buffer_load_dwordx4 v[{r}:{r+3}], v{vOV}, s[28:31], s33 offen offset:{(k-4)*1024} {pol}")
            if k == 7: self.progstamp()

        def issue(w):
            i = st["n"]
            if i - st["landed"] >= w:
                A(f"s_waitcnt vmcnt({w-1})"); st["landed"] = i - (w - 1)
            if i < 0:
                A(f"buffer_load_dwordx4 v7, s[36:39], s40 offen {self.wpol} lds")
                if i < -1: A("s_add_u32 m0, m0, 0x400\ns_add_u32 s40, s40, 0x10000")
            else:
                if i % 8 == 0 and i > 0: A("s_add_u32 s33, s33, 0x20000")
                emit_load(i // 8, i % 8)
            st["n"] += 1

        def need(i):
            if st["landed"] <= i:
                A(f"s_waitcnt vmcnt({st['n'] - 1 - i})"); st["landed"] = i + 1

        def qk(ch, c):
            A(f"v_mfma_f32_16x16x32_bf16 v[{vD+4*c}:{vD+4*c+3}], v[{reg(ch,c)}:{reg(ch,c)+3}], v[{vQ}:{vQ+3}], 0")

        def pv(ch, c):
            r = reg(ch, 4 + c)
            A(f"v_mfma_f32_16x16x16_bf16 v[{vO}:{vO+3}], v[{vP+2*c}:{vP+2*c+1}], v[{r}:{r+1}], v[{vO}:{vO+3}]")
            A(f"v_mfma_f32_16x16x16_bf16 v[{vO+4}:{vO+7}], v[{vP+2*c}:{vP+2*c+1}], v[{r+2}:{r+3}], v[{vO+4}:{vO+7}]")

        def scores():
            A("s_nop 5")
            for c in range(4):
                A(f"v_mov_b32_dpp v{vS+c}, v{vD+4*c} quad_perm:[0,0,0,0] row_mask:0xf bank_mask:0xf")
            for r in range(1, 4):
                for c in range(4):
                    A(f"v_add_f32_dpp v{vS+c}, v{vD+4*c+r}, v{vS+c} quad_perm:[{r},{r},{r},{r}] row_mask:0xf bank_mask:0xf")
            A(f"""
            v_max3_f32 v{vMX}, v{vS}, v{vS+1}, v{vS+2}
            v_max_f32 v{vMX}, v{vMX}, v{vS+3}
            v_mul_f32 v{vMX}, s42, v{vMX}
            """)

        def probs():
            for c in range(4): A(f"v_fma_f32 v{vS+c}, v{vS+c}, s42, -v{vM}")
            for c in range(4): A(f"v_exp_f32 v{vS+c}, v{vS+c}")
            for c in range(4): A(f"v_cvt_pk_bf16_f32 v{vP+2*c+1}, v{vS+c}, v{vS+c}")
            A(f"v_add_f32 v{vS}, v{vS}, v{vS+1}")
            A(f"v_add_f32 v{vS+2}, v{vS+2}, v{vS+3}")
            for c in range(4):
                A(f"v_and_b32 v{vP+2*c}, v{vP+2*c+1}, v{vMA}")
                A(f"v_and_b32 v{vP+2*c+1}, v{vP+2*c+1}, v{vMB}")
            A(f"v_add_f32 v{vL}, v{vL}, v{vS}")
            A(f"v_add_f32 v{vL}, v{vL}, v{vS+2}")

        def softmax(tag):
            scores()
            A(f"""
            v_cmp_gt_f32 vcc, v{vMX}, v{vM}
            s_cbranch_vccz L_keep{tag}
            s_call_b64 s[44:45], L_rescale
            L_keep{tag}:
            """)
            probs()

        def wavemax():
            A(f"""
            v_mov_b32 v{vT}, v{vMX}
            s_nop 1
            v_permlane16_swap_b32 v{vMX}, v{vT}
            s_nop 1
            v_max_f32 v{vMX}, v{vMX}, v{vT}
            v_mov_b32 v{vT}, v{vMX}
            s_nop 1
            v_permlane32_swap_b32 v{vMX}, v{vT}
            s_nop 1
            v_max3_f32 v{vMX}, v{vMX}, v{vT}, v{vM}
            """)

        def rescale():
            A(f"""
            v_sub_f32 v{vAL}, v{vM}, v{vMX}
            v_exp_f32 v{vAL}, v{vAL}
            v_mov_b32 v{vM}, v{vMX}
            v_mul_f32 v{vL}, v{vL}, v{vAL}
            s_nop 0
            """)
            for g in range(4):
                A(f"v_mov_b32_dpp v{vAO}, v{vAL} row_newbcast:{4*g} row_mask:{1<<g:#x} bank_mask:0xf")
                A("s_nop 1")
            for r in range(8): A(f"v_mul_f32 v{vO+r}, v{vO+r}, v{vAO}")

        A("@@HHEAD")
        A(f"""
        L_stream:
        v_and_b32 v6, 3, v1
        v_lshlrev_b32 v{vOK}, 4, v6
        v_bfe_u32 v7, v1, 2, 2
        v_lshl_add_u32 v{vOK}, v7, 8, v{vOK}
        v_lshrrev_b32 v7, 4, v1
        v_lshl_add_u32 v{vOK}, v7, 6, v{vOK}
        v_lshrrev_b32 v7, 3, v1
        v_lshlrev_b32 v7, 13, v7
        v_and_b32 v8, 7, v1
        v_lshl_add_u32 v7, v8, 4, v7
        s_sub_u32 s40, s20, 1
        s_lshl_b32 m0, s40, 12
        s_lshl_b32 s33, s55, 2
        s_add_u32 s33, s33, s40
        s_lshl_b32 s33, s33, 12
        s_lshl_b32 s40, s40, 18
        s_sub_u32 s38, 0x400000, s34
        s_mov_b32 s39, 0x20000
        s_lshl_b32 s35, s54, 22
        s_mov_b32 s26, 0x400000
        s_mov_b32 s30, 0x400000
        {"s_mov_b32 s82, 0" if self.prog else ""}
        {"v_mov_b32 v26, 0" if self.prog else ""}
        s_waitcnt lgkmcnt(0)
        s_add_u32 s36, s10, s34
        s_addc_u32 s37, s11, 0
        s_add_u32 s24, s6, s35
        s_addc_u32 s25, s7, 0
        s_add_u32 s28, s8, s35
        s_addc_u32 s29, s9, 0
        """)
        told = False
        if self.b0 == "first": A("s_barrier")
        for i in range(-4, 8 * DP):
            issue(WP)
            if st["landed"] >= 0 and not told:
                A(f"s_mov_b64 exec, 1\nds_write_b32 v{vP}, v{vP} offset:{LDS_WF}\ns_mov_b64 exec, -1"); told = True
            if i == WP - 5:
                bits = struct.unpack("<I", struct.pack("<f", math.log2(math.e) / math.sqrt(128.0)))[0]
                A(f"""
                v_mov_b32 v7, 0xffff
                v_mov_b32 v{vT}, 0xffff0000
                v_cmp_eq_u32 vcc, 0, v6
                v_cmp_eq_u32 s[46:47], 1, v6
                v_cmp_eq_u32 s[48:49], 2, v6
                v_cmp_eq_u32 s[50:51], 3, v6
                v_cndmask_b32 v{vMA}, 0, v7, vcc
                v_cndmask_b32 v{vMA}, v{vMA}, v{vT}, s[46:47]
                v_cndmask_b32 v{vMB}, 0, v7, s[48:49]
                v_cndmask_b32 v{vMB}, v{vMB}, v{vT}, s[50:51]
                v_mov_b32 v{vM}, 0xff7fffff
                v_mov_b32 v{vL}, 0
                """)
                for r in range(8): A(f"v_mov_b32 v{vO+r}, 0")
                A(f"s_mov_b32 s42, {bits:#x}")
                if self.stamps: A("s_mov_b32 s57, 0")
                A(f"s_lshl_b32 s40, s20, 2\ns_sub_u32 s40, s40, 4\nv_mov_b32 v{vP}, s40")
                if self.b0 != "first": A("s_barrier")
        self.stamp(1)
        A("s_branch L_stream2")
        A("@@HFRONT")
        A("L_rescale:")
        wavemax()
        rescale()
        A("s_setpc_b64 s[44:45]")
        A(f"""
        L_stream2:
        s_mov_b32 s43, 0
        L_waitq:
        ds_read_b128 v[{vQ}:{vQ+3}], v{vOV} offset:{LDS_Q}
        s_add_u32 s43, s43, 1
        s_waitcnt lgkmcnt(0)
        v_max3_u32 v{vT}, v{vQ}, v{vQ+1}, v{vQ+2}
        v_max_u32 v{vT}, v{vT}, v{vQ+3}
        v_cmp_eq_u32 vcc, -1, v{vT}
        s_cbranch_vccz L_haveq
        s_sleep 1
        s_cmp_lt_u32 s43, {SPIN_MAX * 16}
        s_cbranch_scc1 L_waitq
        L_haveq:
        """)
        self.stamp(2)
        target = 8 * C0 + W
        todo = target - st["n"]
        points, done = 2 * C0, 0
        def free_limit(ch, half):
            lim = st["n"]
            while lim < target:
                prev = lim // 8 - DP
                if prev < ch or (prev == ch and lim % 8 < 4 * half): lim += 1
                else: break
            return lim
        for ch in range(C0):
            if ch == self.split:
                A("s_branch L_stream3\n@@HMID\nL_stream3:")
            for half in (1, 2):
                for c in range(4):
                    need(8 * ch + 4 * (half - 1) + c)
                    (qk if half == 1 else pv)(ch, c)
                done += 1
                want = 8 * DP + self.FR + -(-(todo - self.FR) * done // points)
                lim = free_limit(ch, half)
                while st["n"] < min(want, lim): issue(W)
                if half == 1: softmax(f"p{ch}")
        assert st["n"] == target, (st, target)
        A(f"s_mov_b32 s43, {32 - C0}")
        if self.ms:
            spread = [0x00, 0x10, 0x11, 0x49, 0x55, 0x6d, 0x77, 0x7f, 0xff]
            enc = lambda n: spread[n] if n >= 0 else spread[-n] << 8
            if self.etab:
                assert not self.neg
                tb = sum((spread[n] | (e << 8)) << (16 * i) for i, (n, e) in enumerate(zip(self.table, self.etab)))
                enc = lambda n: spread[n] | (E << 8)
            else:
                tb = sum(enc(n) << (16 * i) for i, n in enumerate(self.table))
            mm = 0
            for m in self.ms: mm |= (1 << m) | (1 << (m - self.lagk)) | (1 << (m - self.lagk - 1))
            A(f"""
            s_mov_b32 s52, {enc(self.base)}
            s_mov_b32 s53, {mm:#x}
            s_mov_b32 s46, 0
            s_mov_b32 s41, {self.rk + 32}
            s_mul_i32 s35, s21, {CS}
            s_add_u32 s35, s35, {WS_CNT}
            s_add_u32 s48, s18, s35
            s_addc_u32 s49, s19, 0
            """)
            for i in range(4): A(f"s_mov_b32 s{84+i}, {(tb >> (32*i)) & 0xffffffff:#x}")

        def loop(label, w, until, ctl):
            A(f"{label}:")
            def iss(k):
                if k + w == 8: A("s_add_u32 s33, s33, 0x20000\ns_sub_u32 s43, s43, 1")
                emit_load(C0, (k + w) % 8)
            for k in range(8):
                if ctl:
                    A(f"s_bitcmp1_b32 s52, {k}\ns_cbranch_scc1 {label}_w{k}")
                    if self.neg and k in (0, 4):
                        A(f"s_bitcmp0_b32 s52, {k+8}\ns_cbranch_scc1 {label}_v{k}\ns_waitcnt vmcnt({w-2})\n{label}_v{k}:")
                    A(f"s_waitcnt vmcnt({w-1})\n{label}_w{k}:")
                    iss(k)
                    A(f"s_waitcnt vmcnt({w})")
                elif label == "L_loop" and ([0x00, 0x10, 0x11, 0x49, 0x55, 0x6d, 0x77, 0x7f, 0xff][self.w8] >> k) & 1:
                    iss(k)
                    A(f"s_waitcnt vmcnt({w})")
                else:
                    A(f"s_waitcnt vmcnt({w-1})")
                    if w < 8: iss(k)
                if k < 4: qk(C0, k)
                else: pv(C0, k - 4)
                if w == 8: iss(k)
                if k == 3: softmax(label)
            if ctl:
                A(f"s_bitcmp1_b32 s53, s43\ns_cbranch_scc0 {label}_m\ns_call_b64 s[44:45], L_rank\n{label}_m:")
            if ctl and self.etab:
                A(f"s_lshr_b32 s50, s52, 8\ns_cmp_gt_u32 s43, s50\ns_cbranch_scc1 {label}")
            else:
                A(f"s_cmp_lg_u32 s43, {until}\ns_cbranch_scc1 {label}")
        loop("L_loop", W, E, bool(self.ms))
        A("s_branch L_page2")
        if self.ms:
            A(f"""
            ; At a milestone wave 1 counts itself in among its seven peers (same a); how many were there first decides
            L_rank:
            s_add_u32 s46, s46, 1
            v_mov_b32 v{vT}, 0
            s_cmp_eq_u32 s46, 3
            s_cbranch_scc1 L_rank_take
            s_cmp_lg_u32 s20, 1
            s_cbranch_scc1 L_rank_ret
            s_cmp_eq_u32 s46, 2
            s_cbranch_scc1 L_rank_use
            s_mov_b32 s47, 1
            s_atomic_add s47, s[48:49], s41 glc
            s_add_u32 s41, s41, 4
            L_rank_ret:
            s_setpc_b64 s[44:45]
            L_rank_use:
            s_waitcnt lgkmcnt(0)
            s_and_b32 s47, s47, 7
            s_lshr_b32 m0, s47, 1
            s_lshl_b32 s47, s47, 4
            s_movrels_b32 s36, s84
            s_lshr_b32 s52, s36, s47
            s_and_b32 s52, s52, 0xffff
            v_mov_b32 v{vMX}, s52
            ds_write_b32 v{vT}, v{vMX} offset:{LDS_FLAG+8}
            s_setpc_b64 s[44:45]
            L_rank_take:
            ds_read_b32 v{vT}, v{vT} offset:{LDS_FLAG+8}
            s_mov_b32 s46, 0
            s_waitcnt lgkmcnt(0)
            v_readfirstlane_b32 s47, v{vT}
            s_cmp_eq_u32 s47, -1
            s_cselect_b32 s52, s52, s47
            s_setpc_b64 s[44:45]
            """)
        if self.align: A(".p2align 12")
        A("L_helper3:\ns_branch L_helper4")
        A("L_page2:")
        for k in range(W, W2): emit_load(C0, k)
        a0, a1, a2, a3, a4, a5, a6, a7 = range(RING, RING + 8)
        A(f"""
        s_sub_u32 s34, s20, 1
        v_lshrrev_b32 v6, 4, v1
        v_and_b32 v7, 15, v1
        v_lshlrev_b32 v{a0}, 9, v6
        v_lshl_add_u32 v{a0}, v7, 5, v{a0}
        s_lshl_b32 s35, s34, 11
        v_add_u32 v{a0}, s35, v{a0}
        s_lshl_b32 s41, s34, 2
        v_lshl_add_u32 v{a1}, v1, 2, s41
        v_and_b32 v{a2}, 12, v1
        v_lshlrev_b32 v{a2}, 2, v{a2}
        s_lshl_b32 s35, s34, 9
        v_lshl_add_u32 v{a3}, v1, 3, s35
        s_lshl_b32 s35, s34, 4
        v_mov_b32 v{a4}, s35
        s_lshl_b32 s35, s56, 10
        s_lshl_b32 s36, s34, 8
        s_add_u32 s35, s35, s36
        s_add_u32 s35, s35, {WS_P1}
        v_lshl_add_u32 v{a5}, v1, 2, s35
        s_lshl_b32 s35, s56, 4
        s_add_u32 s35, s35, s34
        s_lshl_b32 s35, s35, 3
        s_add_u32 s35, s35, {WS_ML}
        v_mov_b32 v{a6}, s35
        v_mov_b32 v{a7}, 0
        """)
        if self.etab:
            A("s_cmp_eq_u32 s43, 1\ns_cbranch_scc1 L_last")
            loop("L_loop2", W2, 1, False)
            A("L_last:")
        elif E > 1: loop("L_loop2", W2, 1, False)
        self.jit(2)
        for k in range(4):
            if k == 0:
                A(f"s_waitcnt vmcnt({W2-1})")
                for k2 in range(W2, 8): emit_load(C0, k2)
            else: A(f"s_waitcnt vmcnt({7-k})")
            qk(C0, k)
        scores()
        wavemax()
        A(f"""
        s_mov_b64 exec, 0x1111
        ds_write_b32 v{a1}, v{vMX} offset:{LDS_ML}
        s_mov_b64 exec, -1
        s_waitcnt lgkmcnt(0)
        s_barrier
        ds_read_b128 v[28:31], v{a2} offset:{LDS_ML}
        ds_read_b32 v{a7}, v{a7} offset:{LDS_FLAG+4}
        s_waitcnt lgkmcnt(1)
        v_max3_f32 v{vMX}, v28, v29, v30
        v_max_f32 v{vMX}, v{vMX}, v31
        """)
        rescale()
        probs()
        A(f"""
        v_mov_b32 v{vT}, v{vL}
        v_readlane_b32 s36, v{vM}, s41
        s_waitcnt lgkmcnt(0)
        v_permlane16_swap_b32 v{vL}, v{vT}
        v_cmp_eq_u32 vcc, 1, v{a7}
        s_min_u32 s36, s36, -2
        v_add_f32 v{vL}, v{vL}, v{vT}
        v_mov_b32 v{vT}, v{vL}
        v_mov_b32 v44, s36
        s_nop 0
        v_permlane32_swap_b32 v{vL}, v{vT}
        s_nop 0
        v_add_f32 v{vL}, v{vL}, v{vT}
        s_mov_b64 exec, 0x1111
        ds_write_b32 v{a1}, v{vL} offset:{LDS_ML+64}
        s_mov_b64 exec, -1
        """)
        for c in range(4):
            A(f"s_waitcnt vmcnt({3-c})")
            pv(C0, c)
        self.stamp(3)
        A(f"""
        s_nop 6
        ds_write_b128 v{a0}, v[{vO}:{vO+3}] offset:{LDS_O}
        ds_write_b128 v{a0}, v[{vO+4}:{vO+7}] offset:{LDS_O+16}
        s_waitcnt lgkmcnt(0)
        s_barrier
        ds_read_b64 v[36:37], v{a3} offset:{LDS_O}
        ds_read_b64 v[38:39], v{a3} offset:{LDS_O+2048}
        ds_read_b64 v[40:41], v{a3} offset:{LDS_O+4096}
        ds_read_b64 v[42:43], v{a3} offset:{LDS_O+6144}
        ds_read_b128 v[32:35], v{a4} offset:{LDS_ML+64}
        s_waitcnt lgkmcnt(3)
        v_add_f32 v36, v36, v38
        v_add_f32 v37, v37, v39
        s_waitcnt lgkmcnt(1)
        v_add_f32 v40, v40, v42
        v_add_f32 v41, v41, v43
        v_add_f32 v36, v36, v40
        v_add_f32 v37, v37, v41
        v_cvt_pk_bf16_f32 v48, v36, v37
        s_waitcnt lgkmcnt(0)
        v_min_u32 v48, -2, v48
        v_add_f32 v32, v32, v33
        v_add_f32 v34, v34, v35
        v_mov_b32_dpp v49, v48 quad_perm:[1,1,1,1] row_mask:0xf bank_mask:0xf
        v_mov_b32_dpp v50, v48 quad_perm:[2,2,2,2] row_mask:0xf bank_mask:0xf
        v_mov_b32_dpp v51, v48 quad_perm:[3,3,3,3] row_mask:0xf bank_mask:0xf
        v_add_f32 v45, v32, v34
        s_mov_b32 exec_lo, 0x11111111
        s_mov_b32 exec_hi, 0x11111111
        v_min_u32 v45, -2, v45
        s_cbranch_vccz L_pub_far
        global_store_dwordx4 v{a5}, v[48:51], s[18:19]
        s_mov_b64 exec, 1
        global_store_dwordx2 v{a6}, v[44:45], s[18:19]
        {"s_memrealtime s[68:69]" if self.stamps else ""}
        {"" if self.clean else ("s_branch L_pub_done" if self.stamps else "s_endpgm")}
        {"s_barrier" if self.clean else ""}
        s_mov_b32 exec_lo, 0x11111111
        s_mov_b32 exec_hi, 0x11111111
        L_pub_far:
        global_store_dwordx4 v{a5}, v[48:51], s[18:19] sc1
        s_mov_b64 exec, 1
        global_store_dwordx2 v{a6}, v[44:45], s[18:19] sc1
        {"s_cbranch_vccnz L_pub_done" if self.stamps else ""}
        {"s_memrealtime s[68:69]" if self.stamps else ""}
        L_pub_done:
        """)
        if self.prog:
            A(f"s_mov_b64 exec, -1\ns_lshl_b32 s58, s2, 2\ns_add_u32 s58, s58, s20\ns_sub_u32 s58, s58, 1\ns_lshl_b32 s58, s58, 8\ns_add_u32 s58, s58, {WS_STAMP + 0x100000}")
            A("v_lshl_add_u32 v2, v1, 2, s58\nglobal_store_dword v2, v26, s[18:19]")
        self.stamp_out(5)
        A("s_endpgm")

    def nibble_sum(self, d, s, t):
        self.A(f"""
        v_and_b32 v{d}, 0x0f0f0f0f, v{s}
        v_lshrrev_b32 v{t}, 4, v{s}
        v_and_b32 v{t}, 0x0f0f0f0f, v{t}
        v_add_u32 v{d}, v{d}, v{t}
        v_sad_u8 v{d}, v{d}, 0, 0
        """)

    def helper(self):
        A, wpol = self.A, self.wpol
        WR, XR, QA = 32, 96, 160
        A("@@BEGIN_HHEAD")
        A(f"""
        s_setprio 3
        v_mov_b32 v8, -1
        v_mov_b32 v9, -1
        v_mov_b32 v10, -1
        v_mov_b32 v11, -1
        v_mov_b32 v5, 0
        ds_write_b128 v3, v[8:11] offset:{LDS_Q}
        ds_write_b128 v5, v[8:11] offset:{LDS_FLAG}
        ds_write_b128 v5, v[8:11] offset:{LDS_WF}
        s_mul_i32 s52, s54, {CS}
        s_add_u32 s52, s52, {WS_CNT}
        v_lshrrev_b32 v6, 4, v1
        v_and_b32 v14, 3, v1
        v_lshlrev_b32 v4, 10, v14
        v_lshl_add_u32 v4, v6, 4, v4
        s_lshl_b32 s35, s53, 8
        v_add_u32 v4, s35, v4
        v_and_b32 v7, 8, v1
        v_lshl_add_u32 v7, v7, {3 if self.rk == 256 else 2}, v1
        v_lshl_add_u32 v7, v7, 2, s52
        s_cmp_lg_u32 s55, 0
        s_waitcnt lgkmcnt(0)
        s_cbranch_scc1 L_noclear
        s_mov_b64 exec, {0xff03 if self.ms else 3:#x}
        global_store_dword v7, v5, s[18:19] sc1
        s_mov_b64 exec, -1
        L_noclear:
        s_barrier
        """)
        if self.vtouch:
            A("""
            s_lshl_b32 s35, s54, 22
            s_lshl_b32 s36, s55, 14
            s_add_u32 s35, s35, s36
            v_mov_b32 v7, s35
            s_mov_b64 exec, 1
            global_load_dword v26, v7, s[8:9] nt
            s_mov_b64 exec, -1
            """)
        for t in range(4):
            A(f"global_load_dwordx4 v[{XR+4*t}:{XR+4*t+3}], v4, s[4:5] offset:{64*t}")
        self.jit(5)
        A("s_branch L_helper1\n@@END\n@@BEGIN_HFRONT")
        A(f"""
        L_helper1:
        s_getpc_b64 s[36:37]
        L_pc:
        s_sub_u32 s36, s36, L_pc-{NAME}
        s_subb_u32 s37, s37, 0
        v_lshl_add_u32 v4, v1, 5, s21
        v_lshlrev_b32 v4, 7, v4
        v_min_u32 v4, L_code_end-{NAME}-4, v4
        s_mov_b64 exec, 7
        global_load_dword v25, v4, s[36:37]
        s_mov_b64 exec, -1
        s_lshl_b32 s35, s22, 5
        v_lshlrev_b32 v22, 5, v1
        s_cmp_lg_u32 s55, 0
        s_cbranch_scc1 L_nosig
        s_add_u32 s46, s16, s35
        s_addc_u32 s47, s17, 0
        s_mov_b32 s48, 1
        s_waitcnt vmcnt({6 if self.vtouch else 5})
        s_atomic_add s48, s[46:47], 0x0
        L_nosig:
        v_and_b32 v7, 15, v1
        v_lshrrev_b32 v13, 2, v7
        v_lshrrev_b32 v2, 3, v1
        v_and_b32 v4, 7, v1
        v_lshlrev_b32 v4, 4, v4
        v_lshl_add_u32 v2, v2, 10, v4
        s_mul_i32 s41, s22, {CS}
        s_add_u32 s41, s41, {WS_CNT}
        v_mul_u32_u24 v30, {8*CS}, v1
        v_add_u32 v30, s41, v30
        v_lshlrev_b32 v15, 16, v14
        v_lshl_add_u32 v15, v13, 6, v15
        v_lshl_add_u32 v15, v6, 4, v15
        s_lshl_b32 s35, s22, 13
        s_lshl_b32 s41, s21, 8
        s_add_u32 s35, s35, s41
        v_add_u32 v15, s35, v15
        v_lshlrev_b32 v23, 5, v14
        v_lshl_add_u32 v23, v13, 9, v23
        v_lshl_add_u32 v23, v6, 7, v23
        s_lshl_b32 s35, s54, 13
        v_add_u32 v23, s35, v23
        v_add_u32 v29, 0x1000, v23
        v_lshl_add_u32 v13, v6, 3, v13
        v_lshlrev_b32 v13, 7, v13
        v_lshl_add_u32 v13, v14, 3, v13
        s_lshl_b32 s35, s56, 10
        s_add_u32 s35, s35, {WS_P1}
        v_add_u32 v20, s35, v3
        s_lshl_b32 s35, s56, 7
        s_add_u32 s35, s35, {WS_ML}
        v_add_u32 v21, s35, v3
        s_and_b32 s38, s21, 3
        s_lshl_b32 s39, s22, 2
        s_add_u32 s38, s38, s39
        s_lshr_b32 s39, s21, 2
        s_lshl_b32 s35, s38, 3
        s_add_u32 s35, s35, s39
        s_lshl_b32 s35, s35, 10
        s_add_u32 s35, s35, {WS_P2}
        v_add_u32 v12, s35, v3
        s_mov_b32 s49, 0
        L_waitw:
        ds_read_b128 v[16:19], v5 offset:{LDS_WF}
        s_add_u32 s49, s49, 1
        s_waitcnt lgkmcnt(0)
        v_max3_u32 v16, v16, v17, v18
        v_max_u32 v16, v16, v19
        v_cmp_eq_u32 vcc, -1, v16
        s_cbranch_vccz L_havew
        s_cmp_lt_u32 s49, {SPIN_MAX * 16}
        s_cbranch_scc1 L_waitw
        L_havew:
        s_mov_b64 exec, 0xff
        global_load_dword v24, v22, s[16:17] sc1
        s_mov_b64 exec, -1
        s_waitcnt vmcnt(2)
        """)
        self.stamp(1)
        def rd(k):
            t, nt = k // 4, k % 4
            r = WR + 4 * k
            A(f"ds_read_b64_tr_b16 v[{r}:{r+1}], v13 offset:{LDS_W + t*4096 + nt*32}")
            A(f"ds_read_b64_tr_b16 v[{r+2}:{r+3}], v13 offset:{LDS_W + t*4096 + nt*32 + 512}")
        for k in range(6): rd(k)
        for k in range(16):
            t, nt = k // 4, k % 4
            A(f"s_waitcnt lgkmcnt({2*min(5, 15-k)})")
            c = QA + 4 * nt
            A(f"v_mfma_f32_16x16x32_bf16 v[{c}:{c+3}], v[{WR+4*k}:{WR+4*k+3}], v[{XR+4*t}:{XR+4*t+3}], {'0' if t == 0 else f'v[{c}:{c+3}]'}")
            if k + 6 < 16: rd(k + 6)
        A("s_nop 5")
        for nt in range(1, 4):
            for r in range(4):
                A(f"v_mov_b32_dpp v{QA+r}, v{QA+4*nt+r} quad_perm:[0,1,2,3] row_mask:0xf bank_mask:{1<<nt:#x}")
        self.jit(1)
        A(f"global_store_dwordx4 v15, v[{QA}:{QA+3}], s[18:19]")
        if self.cleanq: A("v_mov_b32 v176, v15")
        self.stamp(2)
        A(f"""
        global_store_dwordx4 v12, v[8:11], s[18:19] sc1
        global_store_dwordx4 v20, v[8:11], s[18:19]
        s_mov_b64 exec, 0xff
        global_store_dwordx4 v21, v[8:11], s[18:19]
        s_getreg_b32 s59, hwreg(HW_REG_XCC_ID, 0, 3)
        s_lshl_b32 s59, s59, 2
        s_lshl_b32 s48, 1, s59
        s_add_u32 s46, s18, s52
        s_addc_u32 s47, s19, 0
        s_mov_b32 s49, 0
        s_branch L_chkflag
        L_pollflag:
        s_sleep {self.fsleep}
        global_load_dword v24, v22, s[16:17] sc1
        L_chkflag:
        s_add_u32 s49, s49, 1
        s_waitcnt vmcnt(0)
        v_cmp_gt_u32 vcc, 4, v24
        s_cbranch_vccz L_gotflag
        s_cmp_lt_u32 s49, {SPIN_MAX}
        s_cbranch_scc1 L_pollflag
        L_gotflag:
        s_atomic_add s48, s[46:47], 0x0
        s_mov_b64 exec, -1
        s_lshl_b32 s35, s38, 17
        s_lshl_b32 s41, s39, 7
        s_add_u32 s35, s35, s41
        s_add_u32 s24, s12, s35
        s_addc_u32 s25, s13, 0
        s_sub_u32 s26, 0x400000, s35
        s_mov_b32 m0, {LDS_W}
        s_mov_b32 s33, 0
        """)
        for i in range(self.wofirst):
            A(f"""
            buffer_load_dwordx4 v2, s[24:27], s33 offen {wpol} lds
            s_add_u32 m0, m0, 0x400
            s_add_u32 s33, s33, 0x2000
            s_waitcnt vmcnt(0)
            """)
        A(f"""
        s_mov_b64 exec, 15
        s_mov_b32 s49, 0
        s_branch L_pollq1
        L_pollq:
        s_sleep {self.csleep}
        L_pollq1:
        global_load_dword v24, v30, s[18:19] sc1
        s_add_u32 s49, s49, 1
        s_waitcnt vmcnt(0)
        """)
        self.nibble_sum(25, 24, 26)
        A(f"""
        v_cmp_ne_u32 vcc, 8, v25
        s_cbranch_vccz L_gotq
        s_cmp_lt_u32 s49, {SPIN_MAX}
        s_cbranch_scc1 L_pollq
        L_gotq:
        s_lshl_b32 s48, 8, s59
        v_cmp_ne_u32 vcc, s48, v24
        s_mov_b32 s59, 1
        s_mov_b64 exec, -1
        {"s_cbranch_vccz L_near" if not self.forcefar else ""}
        s_mov_b32 s59, 0
        global_store_dwordx4 v15, v[{QA}:{QA+3}], s[18:19] sc1
        global_store_dwordx4 v20, v[8:11], s[18:19] sc1
        s_mov_b64 exec, 0xff
        global_store_dwordx4 v21, v[8:11], s[18:19] sc1
        s_mov_b64 exec, 15
        s_mov_b32 s48, 1
        s_waitcnt vmcnt(0)
        s_atomic_add s48, s[46:47], 0x4
        L_pollq2:
        s_sleep 32
        global_load_dword v24, v30, s[18:19] offset:4 sc1
        s_add_u32 s49, s49, 1
        s_waitcnt vmcnt(0)
        v_cmp_ne_u32 vcc, 8, v24
        s_cbranch_vccz L_gotq2
        s_cmp_lt_u32 s49, {SPIN_MAX}
        s_cbranch_scc1 L_pollq2
        L_gotq2:
        s_mov_b64 exec, -1
        L_near:
        """)
        for kq in range(4):
            for e in range(2):
                r = WR + 8 * kq + 4 * e
                A(f"global_load_dwordx4 v[{r}:{r+3}], v{23 if kq < 2 else 29}, s[18:19] offset:{(kq % 2) * 2048 + 16 * e} sc1")
        A("s_waitcnt vmcnt(4)")
        for j in range(8): A(f"v_add_f32 v{WR+j}, v{WR+j}, v{WR+8+j}")
        A("s_waitcnt vmcnt(0)")
        for j in range(8): A(f"v_add_f32 v{WR+16+j}, v{WR+16+j}, v{WR+24+j}")
        for j in range(8): A(f"v_add_f32 v{WR+j}, v{WR+j}, v{WR+16+j}")
        for j in range(4): A(f"v_cvt_pk_bf16_f32 v{24+j}, v{WR+2*j}, v{WR+2*j+1}")
        for j in range(4): A(f"v_min_u32 v{24+j}, -2, v{24+j}")
        A(f"ds_write_b128 v3, v[24:27] offset:{LDS_Q}")
        self.stamp(3)
        if self.stamps: A("s_mov_b32 s57, s49")
        A("s_branch L_helper2\n@@END\n@@BEGIN_HMID")
        if self.align: A(".p2align 12")
        A("L_helper2:")
        self.jit(4)
        self.stamp(4)
        A(f"""
        L_wo:
        s_waitcnt vmcnt({self.wopace})
        buffer_load_dwordx4 v2, s[24:27], s33 offen {wpol} lds
        s_add_u32 m0, m0, 0x400
        s_add_u32 s33, s33, 0x2000
        s_cmp_lt_u32 s33, 0x20000
        s_cbranch_scc1 L_wo
        ; wait for all first reports: every output partial slot is empty
        v_mul_u32_u24 v22, {CS}, v1
        v_add_u32 v22, {WS_CNT}, v22
        s_mov_b32 s49, 0
        s_mov_b32 exec_hi, 0
        L_pollall:
        global_load_dword v24, v22, s[18:19] sc1
        s_add_u32 s49, s49, 1
        s_waitcnt vmcnt(0)
        """)
        self.nibble_sum(25, 24, 26)
        A(f"""
        v_cmp_ne_u32 vcc, 8, v25
        s_cbranch_vccz L_gotall
        s_sleep 32
        s_cmp_lt_u32 s49, {SPIN_MAX}
        s_cbranch_scc1 L_pollall
        L_gotall:
        s_mov_b64 exec, -1
        v_mov_b32 v25, s59
        ds_write_b32 v5, v25 offset:{LDS_FLAG+4}
        s_cmp_eq_u32 s39, s22
        s_cselect_b32 s59, s59, 0
        s_and_b32 s41, s38, 3
        v_lshrrev_b32 v15, 2, v7
        v_lshlrev_b32 v15, 16, v15
        v_lshl_add_u32 v15, v14, 10, v15
        v_lshl_add_u32 v15, v6, 4, v15
        s_lshl_b32 s35, s22, 13
        s_lshl_b32 s50, s41, 8
        s_add_u32 s35, s35, s50
        s_add_u32 s35, s35, {WS_P1}
        v_add_u32 v15, s35, v15
        v_add_u32 v16, 0x1000, v15
        v_and_b32 v17, 7, v1
        v_lshlrev_b32 v17, 7, v17
        v_lshl_add_u32 v17, v6, 13, v17
        s_lshl_b32 s35, s22, 10
        s_lshl_b32 s50, s41, 3
        s_add_u32 s35, s35, s50
        s_add_u32 s35, s35, {WS_ML}
        v_add_u32 v17, s35, v17
        v_lshrrev_b32 v18, 1, v1
        v_lshlrev_b32 v18, 13, v18
        v_and_b32 v19, 1, v1
        v_lshl_add_u32 v18, v19, 4, v18
        s_lshl_b32 s35, s22, 10
        s_lshl_b32 s50, s21, 5
        s_add_u32 s35, s35, s50
        s_add_u32 s35, s35, {WS_P2}
        v_add_u32 v18, s35, v18
        v_and_b32 v19, 1, v6
        v_lshlrev_b32 v19, 6, v19
        v_lshrrev_b32 v20, 1, v6
        v_lshl_add_u32 v19, v20, 5, v19
        s_lshr_b32 s35, s21, 3
        s_lshl_b32 s35, s35, 10
        s_lshl_b32 s50, s22, 7
        s_add_u32 s35, s35, s50
        s_lshl_b32 s50, s55, 2
        s_add_u32 s35, s35, s50
        v_add_u32 v19, s35, v19
        """)
        BR, AR, CR = 32, 96, 128
        for t in range(4):
            for nt in range(4): rd(4 * t + nt)
            A("s_waitcnt lgkmcnt(0)")
        A("s_mov_b32 s49, 0\ns_waitcnt lgkmcnt(0)\ns_branch L_helper3\n@@END\n@@BEGIN_HTAIL")
        def poll1_loads():
            A("global_load_dwordx2 v[20:21], v17, s[18:19] sc1")
            for u in range(2):
                for t in range(4):
                    r = AR + 16 * u + 4 * t
                    A(f"global_load_dwordx4 v[{r}:{r+3}], v{15+u}, s[18:19] offset:{64*t} sc1")
        A("L_helper4:\ns_barrier")
        if self.nopoll:
            A("s_barrier")
            for i in range(5, 10): self.stamp(i)
            self.stamp_out(10)
            A("s_endpgm")
        poll1_loads()
        A("s_barrier")
        self.stamp(5)
        A("s_branch L_chk1\nL_poll1:")
        if self.t1: A(f"s_sleep {self.t1}")
        poll1_loads()
        A("L_chk1:\ns_add_u32 s49, s49, 1\ns_waitcnt vmcnt(8)\nv_max_u32 v22, v20, v21")
        for k in range(8):
            r = AR + 4 * k
            A(f"s_waitcnt vmcnt({7-k})")
            A(f"v_max3_u32 v22, v22, v{r}, v{r+1}")
            A(f"v_max3_u32 v22, v22, v{r+2}, v{r+3}")
        A(f"""
        v_cmp_eq_u32 vcc, -1, v22
        s_cmp_ge_u32 s49, {SPIN_MAX}
        s_cbranch_scc1 L_got1
        s_and_b64 exec, exec, vcc
        s_cbranch_scc1 L_poll1
        L_got1:
        s_mov_b64 exec, -1
        """)
        self.stamp(6)
        wl = [
            "v_max_f32_dpp v22, v20, v20 row_ror:1 row_mask:0xf bank_mask:0xf",
            "v_max_f32_dpp v22, v22, v22 row_ror:2 row_mask:0xf bank_mask:0xf",
            "v_max_f32_dpp v22, v22, v22 row_ror:4 row_mask:0xf bank_mask:0xf",
            "v_sub_f32 v22, v20, v22",
            "v_exp_f32 v22, v22",
            "v_mul_f32 v23, v22, v21",
            "v_add_f32_dpp v23, v23, v23 row_ror:1 row_mask:0xf bank_mask:0xf",
            "v_add_f32_dpp v23, v23, v23 row_ror:2 row_mask:0xf bank_mask:0xf",
            "v_add_f32_dpp v23, v23, v23 row_ror:4 row_mask:0xf bank_mask:0xf",
            "v_rcp_f32 v23, v23",
            "v_mul_f32 v22, v22, v23",
        ]
        def fm(u, r, nt):
            c = CR + 16 * u + 4 * nt + r
            op = "v_mul_f32_dpp" if (u == 0 and r == 0) else "v_fmac_f32_dpp"
            return f"{op} v{24+nt}, v22, v{c} row_newbcast:{4*u+r} row_mask:0xf bank_mask:0xf"
        f0 = [fm(0, r, nt) for r in range(4) for nt in range(4)]
        k = 0
        for u in range(2):
            for t in range(4):
                for nt in range(4):
                    a, b, c = AR + 16 * u + 4 * t, BR + 16 * t + 4 * nt, CR + 16 * u + 4 * nt
                    A(f"v_mfma_f32_16x16x32_bf16 v[{c}:{c+3}], v[{a}:{a+3}], v[{b}:{b+3}], {'0' if t == 0 else f'v[{c}:{c+3}]'}")
                    k += 1
                    if wl: A(wl.pop(0) + "\ns_nop 0")
                    elif k >= 24 and f0:
                        A(f0.pop(0)); A(f0.pop(0))
        assert not wl
        for x in f0: A(x)
        A("s_nop 4")
        for r in range(4):
            for nt in range(4): A(fm(1, r, nt))
        self.jit(3)
        A("s_cmp_eq_u32 s59, 1\ns_mov_b32 s49, 0")
        for nt in range(4): A(f"v_min_u32 v{24+nt}, -2, v{24+nt}")
        A(f"""
        s_cbranch_scc1 L_p2_near
        global_store_dwordx4 v12, v[24:27], s[18:19] sc1
        s_branch L_p2_done
        L_p2_near:
        global_store_dwordx4 v12, v[24:27], s[18:19]
        L_p2_done:
        {"s_barrier" if self.clean else ""}
        {f"global_store_dwordx4 v176, v[{QA}:{QA+3}], s[18:19] sc1" if self.cleanq else ""}
        """)
        self.stamp(7)
        REDO = f"""s_cmp_lg_u32 s49, {self.nre}
            s_cbranch_scc1 L_poll2a
            s_cmp_lg_u32 s59, 1
            s_cbranch_scc1 L_poll2a
            s_mov_b64 s[40:41], exec
            s_mov_b64 exec, -1
            global_store_dwordx4 v12, v[24:27], s[18:19] sc1
            s_mov_b64 exec, s[40:41]
            s_mov_b32 s59, 0"""
        REDO2 = """s_cmp_lg_u32 s59, 1
            s_cbranch_scc1 L_sum2
            global_store_dwordx4 v12, v[24:27], s[18:19] sc1
            L_sum2:"""
        if self.p2depth == 1:
            A(f"""
            s_branch L_poll2a
            L_poll2:
            {"s_sleep %d" % self.t2 if self.t2 else ""}
            {REDO if self.clean else ""}
            L_poll2a:
            global_load_dwordx4 v[28:31], v18, s[18:19] sc1
            s_add_u32 s49, s49, 1
            s_waitcnt vmcnt(0)
            v_max3_u32 v22, v28, v29, v30
            v_max_u32 v22, v22, v31
            v_cmp_eq_u32 vcc, -1, v22
            s_cmp_ge_u32 s49, {SPIN_MAX}
            s_cbranch_scc1 L_got2
            s_and_b64 exec, exec, vcc
            s_cbranch_scc1 L_poll2
            L_got2:
            s_mov_b64 exec, -1
            {REDO2 if self.clean else ""}
            """)
        else:
            A(f"""
            global_load_dwordx4 v[28:31], v18, s[18:19] sc1
            L_poll2:
            global_load_dwordx4 v[32:35], v18, s[18:19] sc1
            s_add_u32 s49, s49, 1
            s_waitcnt vmcnt(1)
            v_max3_u32 v22, v28, v29, v30
            v_max_u32 v22, v22, v31
            v_cmp_eq_u32 vcc, -1, v22
            s_cbranch_vccz L_got2
            global_load_dwordx4 v[28:31], v18, s[18:19] sc1
            s_waitcnt vmcnt(1)
            v_max3_u32 v22, v32, v33, v34
            v_max_u32 v22, v22, v35
            v_cmp_eq_u32 vcc, -1, v22
            s_cmp_lt_u32 s49, {SPIN_MAX}
            s_cbranch_vccz L_got2b
            s_cbranch_scc1 L_poll2
            L_got2b:
            v_mov_b32 v36, v32
            v_mov_b32 v37, v33
            v_mov_b32 v38, v34
            v_mov_b32 v39, v35
            s_branch L_sum2
            L_got2:
            v_mov_b32 v36, v28
            v_mov_b32 v37, v29
            v_mov_b32 v38, v30
            v_mov_b32 v39, v31
            L_sum2:
            s_nop 0
            """)
        self.stamp(8)
        z = 28 if self.p2depth == 1 else 36
        A(f"""
        v_permlane32_swap_b32 v{z}, v{z+1}
        v_permlane32_swap_b32 v{z+2}, v{z+3}
        s_nop 1
        v_add_f32 v{z}, v{z}, v{z+1}
        v_add_f32 v{z+2}, v{z+2}, v{z+3}
        s_nop 1
        v_permlane16_swap_b32 v{z}, v{z+2}
        s_nop 1
        v_add_f32 v{z}, v{z}, v{z+2}
        s_nop 1
        v_add_f32_dpp v{z}, v{z}, v{z} row_ror:2 row_mask:0xf bank_mask:0xf
        s_nop 1
        v_add_f32_dpp v{z}, v{z}, v{z} row_ror:4 row_mask:0xf bank_mask:0xf
        s_nop 1
        v_add_f32_dpp v{z}, v{z}, v{z} row_ror:8 row_mask:0xf bank_mask:0xf
        s_nop 1
        v_mov_b32_dpp v{z+1}, v{z} quad_perm:[1,1,1,1] row_mask:0xf bank_mask:0xf
        s_mov_b32 exec_lo, 0x00010001
        s_mov_b32 exec_hi, 0x00010001
        v_cvt_pk_bf16_f32 v{z}, v{z}, v{z+1}
        global_store_dword v19, v{z}, s[14:15] {"sc1" if self.clean else ""}
        """)
        self.stamp(9)
        self.stamp_out(10)
        A("L_end:\ns_endpgm\n@@END")

    def build(self):
        A = self.A
        self.L.append(HEADER.rstrip("\n"))
        self.L.append(f"; @launch grid=(256,1,1) block=(320,1,1) lds={LDS_SIZE}")
        A('.amdgcn_target "amdgcn-amd-amdhsa--gfx950"')
        A(".text")
        if self.align:
            self.L.append("; unreached padding: puts the entry at the start of a 4 KiB page (instruction prefetch stops at page ends)")
            A(".p2align 12\n.fill 832, 4, 0xbf810000")
        A(f".globl {NAME}\n.p2align 8\n.type {NAME},@function\n{NAME}:")
        A("""
        s_cmp_ge_u32 s2, 256
        s_cbranch_scc1 L_end
        s_load_dwordx16 s[4:19], s[0:1], 0
        """)
        self.stamp(0)
        self.jit(0)
        A("""
        v_lshrrev_b32 v2, 6, v0
        v_and_b32 v1, 63, v0
        s_lshr_b32 s21, s2, 3
        v_readfirstlane_b32 s20, v2
        s_and_b32 s22, s2, 7
        v_lshlrev_b32 v3, 4, v1
        s_mov_b32 s27, 0x20000
        s_mov_b32 s31, 0x20000
        s_and_b32 s54, s21, 24
        s_add_u32 s54, s54, s22
        s_and_b32 s55, s21, 7
        s_lshl_b32 s56, s54, 3
        s_add_u32 s56, s56, s55
        s_lshr_b32 s53, s21, 3
        s_lshl_b32 s34, s53, 20
        s_lshl_b32 s35, s22, 10
        s_add_u32 s34, s34, s35
        s_lshl_b32 s35, s55, 7
        s_add_u32 s34, s34, s35
        s_cmp_lg_u32 s20, 0
        s_cbranch_scc1 L_stream
        """)
        head = self.L
        self.L = []; self.streamer(); st = self.L
        self.L = []; self.helper(); hl = self.L
        parts, cur = {}, None
        for line in hl:
            t = line.strip()
            if t.startswith("@@BEGIN_"): cur = t[8:]; parts[cur] = []
            elif t == "@@END": cur = None
            else: parts[cur].append(line)
        self.L = head
        for line in st:
            t = line.strip()
            if t.startswith("@@"): self.L += parts.pop(t[2:])
            else: self.L.append(line)
        self.L += parts.pop("HTAIL")
        assert not parts
        A("L_code_end:")
        nv = max(self.nv_stream, 180)
        A(f""".section .rodata,"a"
.p2align 6
.amdhsa_kernel {NAME}
  .amdhsa_next_free_vgpr {nv}
  .amdhsa_next_free_sgpr 96
  .amdhsa_accum_offset {(nv + 3) // 4 * 4}
  .amdhsa_group_segment_fixed_size 0
  .amdhsa_kernarg_size 64
  .amdhsa_user_sgpr_count 2
  .amdhsa_user_sgpr_kernarg_segment_ptr 1
  .amdhsa_system_sgpr_workgroup_id_x 1
  .amdhsa_float_denorm_mode_32 3
.end_amdhsa_kernel""")
        return "\n".join(self.L) + "\n"


if __name__ == "__main__":
    out = sys.argv[1] if len(sys.argv) > 1 else "standalone__gqa_block_cached__decode.s"
    kw = eval("dict(" + (sys.argv[2] if len(sys.argv) > 2 else "") + ")")
    open(out, "w").write(Gen(**kw).build())
```

```python
import sys, math, struct

NAME = "standalone__gqa_block_cached__decode_kernel"
HEADER = """; Kernarg layout for this problem (64 bytes, ptrs only, base s[0:1]):
;   offset  48: d_debug   256 bytes (zero at entry: first counters)
;
"""

WS_Q, WS_P1, WS_ML, WS_P2, WS_CNT, WS_STAMP = 0x0, 0x40000, 0x80000, 0x90000, 0xd0000, 0x200000
CS = 4352
LDS_W, LDS_Q, LDS_O, LDS_ML, LDS_FLAG, LDS_WF, LDS_SIZE = 0, 16384, 17408, 25600, 25728, 25744, 25760
SPIN_MAX = 40000


class Gen:
    def __init__(self, DP=5, EX=2, FR=3, W=5, WP=5, E=3, W2=7, pol="nt", wpol="nt", fsleep=16, csleep=24,
                 wofirst=2, wopace=1, ms=(), table=(0, 0, 0, 0, 1, 2, 4, 8), base=0, lagk=2, b0="first", neg=False, rk=256, w8=0, etab=None, t1=0, t2=0, nopoll=False, clean=False, cleanq=False, nre=3, vtouch=False, jitter=0, skewb=0, skewx=0, perm=None,
                 split=2, align=True, forcefar=False, p2depth=1, stamps=False, prog=False):
        self.__dict__.update(locals())
        self.L = []

    def A(self, s):
        for line in s.strip("\n").split("\n"):
            line = line.strip()
            if not line:
                continue
            self.L.append(line if line.endswith(":") or line.startswith(".") else "    " + line)

    def stamp(self, idx):
        if self.stamps:
            self.A(f"s_memrealtime s[{60+2*idx}:{61+2*idx}]")

    def jit(self, k):
        if self.jitter:
            self.jn = getattr(self, "jn", 0) + 1
            mul = [0x9E3779B1, 0x85EBCA77, 0xC2B2AE3D, 0x27D4EB2F, 0x165667B1, 0xD3A2646D, 0xFD7046C5, 0xB55A4F09][(k + self.jitter) % 8]
            self.A(f"""
            s_add_u32 s94, s2, {17 * self.jitter + k}
            s_mul_i32 s94, s94, {mul:#x}
            s_lshr_b32 s94, s94, 28
            s_cmp_lt_u32 s94, 12
            s_cbranch_scc1 L_j{self.jn}
            s_sub_u32 s94, s94, 11
            s_lshl_b32 s94, s94, 2
            L_jl{self.jn}:
            s_sleep 127
            s_sub_u32 s94, s94, 1
            s_cmp_lg_u32 s94, 0
            s_cbranch_scc1 L_jl{self.jn}
            L_j{self.jn}:
            """)

    def skew_code(self):
        c = ""
        if self.perm:
            km, ka = self.perm
            c += f"s_mul_i32 s93, s54, {km}\ns_and_b32 s93, s93, 15\ns_lshl_b32 s93, s93, 18\ns_add_u32 s93, s93, 0x20000\n"
            c += f"s_mul_i32 s35, s54, {ka}\ns_and_b32 s35, s35, 31\ns_lshl_b32 s35, s35, 17\ns_add_u32 s33, s33, s35\n"
        elif self.skewb or self.skewx:
            c += f"s_mul_i32 s35, s53, {self.skewb}\n"
            if self.skewx: c += f"s_mul_i32 s36, s22, {self.skewx}\ns_add_u32 s35, s35, s36\n"
            c += "s_and_b32 s35, s35, 31\ns_lshl_b32 s35, s35, 17\ns_add_u32 s33, s33, s35\n"
        return c

    def bump(self):
        if self.perm: return "s_add_u32 s33, s33, s93\ns_and_b32 s33, s33, 0x3fffff"
        if self.skewb or self.skewx: return "s_add_u32 s33, s33, 0x20000\ns_and_b32 s33, s33, 0x3fffff"
        return "s_add_u32 s33, s33, 0x20000"

    def progstamp(self):
        if self.prog:
            self.A("s_memrealtime s[80:81]\ns_mov_b32 m0, s82\ns_add_u32 s82, s82, 1\ns_waitcnt lgkmcnt(0)\nv_writelane_b32 v26, s80, m0")

    def stamp_out(self, n):
        if not self.stamps:
            return
        A = self.A
        A("s_waitcnt lgkmcnt(0)")
        A("s_mov_b64 exec, 1")
        A(f"s_mul_i32 s58, s56, 5\ns_add_u32 s58, s58, s20\ns_lshl_b32 s58, s58, 6\ns_add_u32 s58, s58, {WS_STAMP}")
        A("v_mov_b32 v1, s58")
        for i in range(n):
            A(f"v_mov_b32 v2, s{60+2*i}\nglobal_store_dword v1, v2, s[18:19] offset:{4*i}")
        A("v_mov_b32 v2, s57\nglobal_store_dword v1, v2, s[18:19] offset:56")
        A("s_getreg_b32 s58, hwreg(HW_REG_XCC_ID)\nv_mov_b32 v2, s58\nglobal_store_dword v1, v2, s[18:19] offset:60")

    def streamer(self):
        A, DP, EX, W, WP, E, W2, pol = self.A, self.DP, self.EX, self.W, self.WP, self.E, self.W2, self.pol
        vOK, vOV, vMA, vMB = 2, 3, 4, 5
        vQ, vO = 8, 12
        vM, vL, vMX, vT, vAL, vAO = 20, 21, 22, 23, 24, 25
        vD, vS, vP, RING = 28, 44, 48, 56
        self.nv_stream = RING + 32 * DP
        C0 = DP + EX
        assert EX >= 1 and E >= 1

        def slot(ch): return ch if ch < DP else min(ch, C0) - DP
        def reg(ch, k): return RING + 32 * slot(ch) + 4 * k
        st = dict(n=-4, landed=-4)

        def emit_load(ch, k):
            r = reg(ch, k)
            if k < 4: A(f"buffer_load_dwordx4 v[{r}:{r+3}], v{vOK}, s[24:27], s33 offen offset:{k*1024} {pol}")
            else: A(f"buffer_load_dwordx4 v[{r}:{r+3}], v{vOV}, s[28:31], s33 offen offset:{(k-4)*1024} {pol}")
            if k == 7: self.progstamp()

        def issue(w):
            i = st["n"]
            if i - st["landed"] >= w:
                A(f"s_waitcnt vmcnt({w-1})"); st["landed"] = i - (w - 1)
            if i < 0:
                A(f"buffer_load_dwordx4 v7, s[36:39], s40 offen {self.wpol} lds")
                if i < -1: A("s_add_u32 m0, m0, 0x400\ns_add_u32 s40, s40, 0x10000")
            else:
                if i % 8 == 0 and i > 0: A(self.bump())
                emit_load(i // 8, i % 8)
            st["n"] += 1

        def need(i):
            if st["landed"] <= i:
                A(f"s_waitcnt vmcnt({st['n'] - 1 - i})"); st["landed"] = i + 1

        def qk(ch, c):
            A(f"v_mfma_f32_16x16x32_bf16 v[{vD+4*c}:{vD+4*c+3}], v[{reg(ch,c)}:{reg(ch,c)+3}], v[{vQ}:{vQ+3}], 0")

        def pv(ch, c):
            r = reg(ch, 4 + c)
            A(f"v_mfma_f32_16x16x16_bf16 v[{vO}:{vO+3}], v[{vP+2*c}:{vP+2*c+1}], v[{r}:{r+1}], v[{vO}:{vO+3}]")
            A(f"v_mfma_f32_16x16x16_bf16 v[{vO+4}:{vO+7}], v[{vP+2*c}:{vP+2*c+1}], v[{r+2}:{r+3}], v[{vO+4}:{vO+7}]")

        def scores():
            A("s_nop 5")
            for c in range(4):
                A(f"v_mov_b32_dpp v{vS+c}, v{vD+4*c} quad_perm:[0,0,0,0] row_mask:0xf bank_mask:0xf")
            for r in range(1, 4):
                for c in range(4):
                    A(f"v_add_f32_dpp v{vS+c}, v{vD+4*c+r}, v{vS+c} quad_perm:[{r},{r},{r},{r}] row_mask:0xf bank_mask:0xf")
            A(f"""
            v_max3_f32 v{vMX}, v{vS}, v{vS+1}, v{vS+2}
            v_max_f32 v{vMX}, v{vMX}, v{vS+3}
            v_mul_f32 v{vMX}, s42, v{vMX}
            """)

        def probs():
            for c in range(4): A(f"v_fma_f32 v{vS+c}, v{vS+c}, s42, -v{vM}")
            for c in range(4): A(f"v_exp_f32 v{vS+c}, v{vS+c}")
            for c in range(4): A(f"v_cvt_pk_bf16_f32 v{vP+2*c+1}, v{vS+c}, v{vS+c}")
            A(f"v_add_f32 v{vS}, v{vS}, v{vS+1}")
            A(f"v_add_f32 v{vS+2}, v{vS+2}, v{vS+3}")
            for c in range(4):
                A(f"v_and_b32 v{vP+2*c}, v{vP+2*c+1}, v{vMA}")
                A(f"v_and_b32 v{vP+2*c+1}, v{vP+2*c+1}, v{vMB}")
            A(f"v_add_f32 v{vL}, v{vL}, v{vS}")
            A(f"v_add_f32 v{vL}, v{vL}, v{vS+2}")

        def softmax(tag):
            scores()
            A(f"""
            v_cmp_gt_f32 vcc, v{vMX}, v{vM}
            s_cbranch_vccz L_keep{tag}
            s_call_b64 s[44:45], L_rescale
            L_keep{tag}:
            """)
            probs()

        def wavemax():
            A(f"""
            v_mov_b32 v{vT}, v{vMX}
            s_nop 1
            v_permlane16_swap_b32 v{vMX}, v{vT}
            s_nop 1
            v_max_f32 v{vMX}, v{vMX}, v{vT}
            v_mov_b32 v{vT}, v{vMX}
            s_nop 1
            v_permlane32_swap_b32 v{vMX}, v{vT}
            s_nop 1
            v_max3_f32 v{vMX}, v{vMX}, v{vT}, v{vM}
            """)

        def rescale():
            A(f"""
            v_sub_f32 v{vAL}, v{vM}, v{vMX}
            v_exp_f32 v{vAL}, v{vAL}
            v_mov_b32 v{vM}, v{vMX}
            v_mul_f32 v{vL}, v{vL}, v{vAL}
            s_nop 0
            """)
            for g in range(4):
                A(f"v_mov_b32_dpp v{vAO}, v{vAL} row_newbcast:{4*g} row_mask:{1<<g:#x} bank_mask:0xf")
                A("s_nop 1")
            for r in range(8): A(f"v_mul_f32 v{vO+r}, v{vO+r}, v{vAO}")

        A("@@HHEAD")
        A(f"""
        L_stream:
        v_and_b32 v6, 3, v1
        v_lshlrev_b32 v{vOK}, 4, v6
        v_bfe_u32 v7, v1, 2, 2
        v_lshl_add_u32 v{vOK}, v7, 8, v{vOK}
        v_lshrrev_b32 v7, 4, v1
        v_lshl_add_u32 v{vOK}, v7, 6, v{vOK}
        v_lshrrev_b32 v7, 3, v1
        v_lshlrev_b32 v7, 13, v7
        v_and_b32 v8, 7, v1
        v_lshl_add_u32 v7, v8, 4, v7
        s_sub_u32 s40, s20, 1
        s_lshl_b32 m0, s40, 12
        s_lshl_b32 s33, s55, 2
        s_add_u32 s33, s33, s40
        s_lshl_b32 s33, s33, 12
        {self.skew_code()}
        s_lshl_b32 s40, s40, 18
        s_sub_u32 s38, 0x400000, s34
        s_mov_b32 s39, 0x20000
        s_lshl_b32 s35, s54, 22
        s_mov_b32 s26, 0x400000
        s_mov_b32 s30, 0x400000
        {"s_mov_b32 s82, 0" if self.prog else ""}
        {"v_mov_b32 v26, 0" if self.prog else ""}
        s_waitcnt lgkmcnt(0)
        s_add_u32 s36, s10, s34
        s_addc_u32 s37, s11, 0
        s_add_u32 s24, s6, s35
        s_addc_u32 s25, s7, 0
        s_add_u32 s28, s8, s35
        s_addc_u32 s29, s9, 0
        """)
        told = False
        if self.b0 == "first": A("s_barrier")
        for i in range(-4, 8 * DP):
            issue(WP)
            if st["landed"] >= 0 and not told:
                A(f"s_mov_b64 exec, 1\nds_write_b32 v{vP}, v{vP} offset:{LDS_WF}\ns_mov_b64 exec, -1"); told = True
            if i == WP - 5:
                bits = struct.unpack("<I", struct.pack("<f", math.log2(math.e) / math.sqrt(128.0)))[0]
                A(f"""
                v_mov_b32 v7, 0xffff
                v_mov_b32 v{vT}, 0xffff0000
                v_cmp_eq_u32 vcc, 0, v6
                v_cmp_eq_u32 s[46:47], 1, v6
                v_cmp_eq_u32 s[48:49], 2, v6
                v_cmp_eq_u32 s[50:51], 3, v6
                v_cndmask_b32 v{vMA}, 0, v7, vcc
                v_cndmask_b32 v{vMA}, v{vMA}, v{vT}, s[46:47]
                v_cndmask_b32 v{vMB}, 0, v7, s[48:49]
                v_cndmask_b32 v{vMB}, v{vMB}, v{vT}, s[50:51]
                v_mov_b32 v{vM}, 0xff7fffff
                v_mov_b32 v{vL}, 0
                """)
                for r in range(8): A(f"v_mov_b32 v{vO+r}, 0")
                A(f"s_mov_b32 s42, {bits:#x}")
                if self.stamps: A("s_mov_b32 s57, 0")
                A(f"s_lshl_b32 s40, s20, 2\ns_sub_u32 s40, s40, 4\nv_mov_b32 v{vP}, s40")
                if self.b0 != "first": A("s_barrier")
        self.stamp(1)
        A("s_branch L_stream2")
        A("@@HFRONT")
        A("L_rescale:")
        wavemax()
        rescale()
        A("s_setpc_b64 s[44:45]")
        A(f"""
        L_stream2:
        s_mov_b32 s43, 0
        L_waitq:
        ds_read_b128 v[{vQ}:{vQ+3}], v{vOV} offset:{LDS_Q}
        s_add_u32 s43, s43, 1
        s_waitcnt lgkmcnt(0)
        v_max3_u32 v{vT}, v{vQ}, v{vQ+1}, v{vQ+2}
        v_max_u32 v{vT}, v{vT}, v{vQ+3}
        v_cmp_eq_u32 vcc, -1, v{vT}
        s_cbranch_vccz L_haveq
        s_sleep 1
        s_cmp_lt_u32 s43, {SPIN_MAX * 16}
        s_cbranch_scc1 L_waitq
        L_haveq:
        """)
        self.stamp(2)
        target = 8 * C0 + W
        todo = target - st["n"]
        points, done = 2 * C0, 0
        def free_limit(ch, half):
            lim = st["n"]
            while lim < target:
                prev = lim // 8 - DP
                if prev < ch or (prev == ch and lim % 8 < 4 * half): lim += 1
                else: break
            return lim
        for ch in range(C0):
            if ch == self.split:
                A("s_branch L_stream3\n@@HMID\nL_stream3:")
            for half in (1, 2):
                for c in range(4):
                    need(8 * ch + 4 * (half - 1) + c)
                    (qk if half == 1 else pv)(ch, c)
                done += 1
                want = 8 * DP + self.FR + -(-(todo - self.FR) * done // points)
                lim = free_limit(ch, half)
                while st["n"] < min(want, lim): issue(W)
                if half == 1: softmax(f"p{ch}")
        assert st["n"] == target, (st, target)
        A(f"s_mov_b32 s43, {32 - C0}")
        if self.ms:
            spread = [0x00, 0x10, 0x11, 0x49, 0x55, 0x6d, 0x77, 0x7f, 0xff]
            enc = lambda n: spread[n] if n >= 0 else spread[-n] << 8
            if self.etab:
                assert not self.neg
                tb = sum((spread[n] | (e << 8)) << (16 * i) for i, (n, e) in enumerate(zip(self.table, self.etab)))
                enc = lambda n: spread[n] | (E << 8)
            else:
                tb = sum(enc(n) << (16 * i) for i, n in enumerate(self.table))
            mm = 0
            for m in self.ms: mm |= (1 << m) | (1 << (m - self.lagk)) | (1 << (m - self.lagk - 1))
            A(f"""
            s_mov_b32 s52, {enc(self.base)}
            s_mov_b32 s53, {mm:#x}
            s_mov_b32 s46, 0
            s_mov_b32 s41, {self.rk + 32}
            s_mul_i32 s35, s21, {CS}
            s_add_u32 s35, s35, {WS_CNT}
            s_add_u32 s48, s18, s35
            s_addc_u32 s49, s19, 0
            """)
            for i in range(4): A(f"s_mov_b32 s{84+i}, {(tb >> (32*i)) & 0xffffffff:#x}")

        def loop(label, w, until, ctl):
            A(f"{label}:")
            def iss(k):
                if k + w == 8: A(self.bump() + "\ns_sub_u32 s43, s43, 1")
                emit_load(C0, (k + w) % 8)
            for k in range(8):
                if ctl:
                    A(f"s_bitcmp1_b32 s52, {k}\ns_cbranch_scc1 {label}_w{k}")
                    if self.neg and k in (0, 4):
                        A(f"s_bitcmp0_b32 s52, {k+8}\ns_cbranch_scc1 {label}_v{k}\ns_waitcnt vmcnt({w-2})\n{label}_v{k}:")
                    A(f"s_waitcnt vmcnt({w-1})\n{label}_w{k}:")
                    iss(k)
                    A(f"s_waitcnt vmcnt({w})")
                elif label == "L_loop" and ([0x00, 0x10, 0x11, 0x49, 0x55, 0x6d, 0x77, 0x7f, 0xff][self.w8] >> k) & 1:
                    iss(k)
                    A(f"s_waitcnt vmcnt({w})")
                else:
                    A(f"s_waitcnt vmcnt({w-1})")
                    if w < 8: iss(k)
                if k < 4: qk(C0, k)
                else: pv(C0, k - 4)
                if w == 8: iss(k)
                if k == 3: softmax(label)
            if ctl:
                A(f"s_bitcmp1_b32 s53, s43\ns_cbranch_scc0 {label}_m\ns_call_b64 s[44:45], L_rank\n{label}_m:")
            if ctl and self.etab:
                A(f"s_lshr_b32 s50, s52, 8\ns_cmp_gt_u32 s43, s50\ns_cbranch_scc1 {label}")
            else:
                A(f"s_cmp_lg_u32 s43, {until}\ns_cbranch_scc1 {label}")
        loop("L_loop", W, E, bool(self.ms))
        A("s_branch L_page2")
        if self.ms:
            A(f"""
            ; At a milestone wave 1 counts itself in among its seven peers (same a); how many were there first decides
            L_rank:
            s_add_u32 s46, s46, 1
            v_mov_b32 v{vT}, 0
            s_cmp_eq_u32 s46, 3
            s_cbranch_scc1 L_rank_take
            s_cmp_lg_u32 s20, 1
            s_cbranch_scc1 L_rank_ret
            s_cmp_eq_u32 s46, 2
            s_cbranch_scc1 L_rank_use
            s_mov_b32 s47, 1
            s_atomic_add s47, s[48:49], s41 glc
            s_add_u32 s41, s41, 4
            L_rank_ret:
            s_setpc_b64 s[44:45]
            L_rank_use:
            s_waitcnt lgkmcnt(0)
            s_and_b32 s47, s47, 7
            s_lshr_b32 m0, s47, 1
            s_lshl_b32 s47, s47, 4
            s_movrels_b32 s36, s84
            s_lshr_b32 s52, s36, s47
            s_and_b32 s52, s52, 0xffff
            v_mov_b32 v{vMX}, s52
            ds_write_b32 v{vT}, v{vMX} offset:{LDS_FLAG+8}
            s_setpc_b64 s[44:45]
            L_rank_take:
            ds_read_b32 v{vT}, v{vT} offset:{LDS_FLAG+8}
            s_mov_b32 s46, 0
            s_waitcnt lgkmcnt(0)
            v_readfirstlane_b32 s47, v{vT}
            s_cmp_eq_u32 s47, -1
            s_cselect_b32 s52, s52, s47
            s_setpc_b64 s[44:45]
            """)
        if self.align: A(".p2align 12")
        A("L_helper3:\ns_branch L_helper4")
        A("L_page2:")
        for k in range(W, W2): emit_load(C0, k)
        a0, a1, a2, a3, a4, a5, a6, a7 = range(RING, RING + 8)
        A(f"""
        s_sub_u32 s34, s20, 1
        v_lshrrev_b32 v6, 4, v1
        v_and_b32 v7, 15, v1
        v_lshlrev_b32 v{a0}, 9, v6
        v_lshl_add_u32 v{a0}, v7, 5, v{a0}
        s_lshl_b32 s35, s34, 11
        v_add_u32 v{a0}, s35, v{a0}
        s_lshl_b32 s41, s34, 2
        v_lshl_add_u32 v{a1}, v1, 2, s41
        v_and_b32 v{a2}, 12, v1
        v_lshlrev_b32 v{a2}, 2, v{a2}
        s_lshl_b32 s35, s34, 9
        v_lshl_add_u32 v{a3}, v1, 3, s35
        s_lshl_b32 s35, s34, 4
        v_mov_b32 v{a4}, s35
        s_lshl_b32 s35, s56, 10
        s_lshl_b32 s36, s34, 8
        s_add_u32 s35, s35, s36
        s_add_u32 s35, s35, {WS_P1}
        v_lshl_add_u32 v{a5}, v1, 2, s35
        s_lshl_b32 s35, s56, 4
        s_add_u32 s35, s35, s34
        s_lshl_b32 s35, s35, 3
        s_add_u32 s35, s35, {WS_ML}
        v_mov_b32 v{a6}, s35
        v_mov_b32 v{a7}, 0
        """)
        if self.etab:
            A("s_cmp_eq_u32 s43, 1\ns_cbranch_scc1 L_last")
            loop("L_loop2", W2, 1, False)
            A("L_last:")
        elif E > 1: loop("L_loop2", W2, 1, False)
        self.jit(2)
        for k in range(4):
            if k == 0:
                A(f"s_waitcnt vmcnt({W2-1})")
                for k2 in range(W2, 8): emit_load(C0, k2)
            else: A(f"s_waitcnt vmcnt({7-k})")
            qk(C0, k)
        scores()
        wavemax()
        A(f"""
        s_mov_b64 exec, 0x1111
        ds_write_b32 v{a1}, v{vMX} offset:{LDS_ML}
        s_mov_b64 exec, -1
        s_waitcnt lgkmcnt(0)
        s_barrier
        ds_read_b128 v[28:31], v{a2} offset:{LDS_ML}
        ds_read_b32 v{a7}, v{a7} offset:{LDS_FLAG+4}
        s_waitcnt lgkmcnt(1)
        v_max3_f32 v{vMX}, v28, v29, v30
        v_max_f32 v{vMX}, v{vMX}, v31
        """)
        rescale()
        probs()
        A(f"""
        v_mov_b32 v{vT}, v{vL}
        v_readlane_b32 s36, v{vM}, s41
        s_waitcnt lgkmcnt(0)
        v_permlane16_swap_b32 v{vL}, v{vT}
        v_cmp_eq_u32 vcc, 1, v{a7}
        s_min_u32 s36, s36, -2
        v_add_f32 v{vL}, v{vL}, v{vT}
        v_mov_b32 v{vT}, v{vL}
        v_mov_b32 v44, s36
        s_nop 0
        v_permlane32_swap_b32 v{vL}, v{vT}
        s_nop 0
        v_add_f32 v{vL}, v{vL}, v{vT}
        s_mov_b64 exec, 0x1111
        ds_write_b32 v{a1}, v{vL} offset:{LDS_ML+64}
        s_mov_b64 exec, -1
        """)
        for c in range(4):
            A(f"s_waitcnt vmcnt({3-c})")
            pv(C0, c)
        self.stamp(3)
        A(f"""
        s_nop 6
        ds_write_b128 v{a0}, v[{vO}:{vO+3}] offset:{LDS_O}
        ds_write_b128 v{a0}, v[{vO+4}:{vO+7}] offset:{LDS_O+16}
        s_waitcnt lgkmcnt(0)
        s_barrier
        ds_read_b64 v[36:37], v{a3} offset:{LDS_O}
        ds_read_b64 v[38:39], v{a3} offset:{LDS_O+2048}
        ds_read_b64 v[40:41], v{a3} offset:{LDS_O+4096}
        ds_read_b64 v[42:43], v{a3} offset:{LDS_O+6144}
        ds_read_b128 v[32:35], v{a4} offset:{LDS_ML+64}
        s_waitcnt lgkmcnt(3)
        v_add_f32 v36, v36, v38
        v_add_f32 v37, v37, v39
        s_waitcnt lgkmcnt(1)
        v_add_f32 v40, v40, v42
        v_add_f32 v41, v41, v43
        v_add_f32 v36, v36, v40
        v_add_f32 v37, v37, v41
        v_cvt_pk_bf16_f32 v48, v36, v37
        s_waitcnt lgkmcnt(0)
        v_min_u32 v48, -2, v48
        v_add_f32 v32, v32, v33
        v_add_f32 v34, v34, v35
        v_mov_b32_dpp v49, v48 quad_perm:[1,1,1,1] row_mask:0xf bank_mask:0xf
        v_mov_b32_dpp v50, v48 quad_perm:[2,2,2,2] row_mask:0xf bank_mask:0xf
        v_mov_b32_dpp v51, v48 quad_perm:[3,3,3,3] row_mask:0xf bank_mask:0xf
        v_add_f32 v45, v32, v34
        s_mov_b32 exec_lo, 0x11111111
        s_mov_b32 exec_hi, 0x11111111
        v_min_u32 v45, -2, v45
        s_cbranch_vccz L_pub_far
        global_store_dwordx4 v{a5}, v[48:51], s[18:19]
        s_mov_b64 exec, 1
        global_store_dwordx2 v{a6}, v[44:45], s[18:19]
        {"s_memrealtime s[68:69]" if self.stamps else ""}
        {"" if self.clean else ("s_branch L_pub_done" if self.stamps else "s_endpgm")}
        {"s_barrier" if self.clean else ""}
        s_mov_b32 exec_lo, 0x11111111
        s_mov_b32 exec_hi, 0x11111111
        L_pub_far:
        global_store_dwordx4 v{a5}, v[48:51], s[18:19] sc1
        s_mov_b64 exec, 1
        global_store_dwordx2 v{a6}, v[44:45], s[18:19] sc1
        {"s_cbranch_vccnz L_pub_done" if self.stamps else ""}
        {"s_memrealtime s[68:69]" if self.stamps else ""}
        L_pub_done:
        """)
        if self.prog:
            A(f"s_mov_b64 exec, -1\ns_lshl_b32 s58, s2, 2\ns_add_u32 s58, s58, s20\ns_sub_u32 s58, s58, 1\ns_lshl_b32 s58, s58, 8\ns_add_u32 s58, s58, {WS_STAMP + 0x100000}")
            A("v_lshl_add_u32 v2, v1, 2, s58\nglobal_store_dword v2, v26, s[18:19]")
        self.stamp_out(5)
        A("s_endpgm")

    def nibble_sum(self, d, s, t):
        self.A(f"""
        v_and_b32 v{d}, 0x0f0f0f0f, v{s}
        v_lshrrev_b32 v{t}, 4, v{s}
        v_and_b32 v{t}, 0x0f0f0f0f, v{t}
        v_add_u32 v{d}, v{d}, v{t}
        v_sad_u8 v{d}, v{d}, 0, 0
        """)

    def helper(self):
        A, wpol = self.A, self.wpol
        WR, XR, QA = 32, 96, 160
        A("@@BEGIN_HHEAD")
        A(f"""
        s_setprio 3
        v_mov_b32 v8, -1
        v_mov_b32 v9, -1
        v_mov_b32 v10, -1
        v_mov_b32 v11, -1
        v_mov_b32 v5, 0
        ds_write_b128 v3, v[8:11] offset:{LDS_Q}
        ds_write_b128 v5, v[8:11] offset:{LDS_FLAG}
        ds_write_b128 v5, v[8:11] offset:{LDS_WF}
        s_mul_i32 s52, s54, {CS}
        s_add_u32 s52, s52, {WS_CNT}
        v_lshrrev_b32 v6, 4, v1
        v_and_b32 v14, 3, v1
        v_lshlrev_b32 v4, 10, v14
        v_lshl_add_u32 v4, v6, 4, v4
        s_lshl_b32 s35, s53, 8
        v_add_u32 v4, s35, v4
        v_and_b32 v7, 8, v1
        v_lshl_add_u32 v7, v7, {3 if self.rk == 256 else 2}, v1
        v_lshl_add_u32 v7, v7, 2, s52
        s_cmp_lg_u32 s55, 0
        s_waitcnt lgkmcnt(0)
        s_cbranch_scc1 L_noclear
        s_mov_b64 exec, {0xff03 if self.ms else 3:#x}
        global_store_dword v7, v5, s[18:19] sc1
        s_mov_b64 exec, -1
        L_noclear:
        s_barrier
        """)
        if self.vtouch:
            A("""
            s_lshl_b32 s35, s54, 22
            s_lshl_b32 s36, s55, 14
            s_add_u32 s35, s35, s36
            v_mov_b32 v7, s35
            s_mov_b64 exec, 1
            global_load_dword v26, v7, s[8:9] nt
            s_mov_b64 exec, -1
            """)
        for t in range(4):
            A(f"global_load_dwordx4 v[{XR+4*t}:{XR+4*t+3}], v4, s[4:5] offset:{64*t}")
        self.jit(5)
        A("s_branch L_helper1\n@@END\n@@BEGIN_HFRONT")
        A(f"""
        L_helper1:
        s_getpc_b64 s[36:37]
        L_pc:
        s_sub_u32 s36, s36, L_pc-{NAME}
        s_subb_u32 s37, s37, 0
        v_lshl_add_u32 v4, v1, 5, s21
        v_lshlrev_b32 v4, 7, v4
        v_min_u32 v4, L_code_end-{NAME}-4, v4
        s_mov_b64 exec, 7
        global_load_dword v25, v4, s[36:37]
        s_mov_b64 exec, -1
        s_lshl_b32 s35, s22, 5
        v_lshlrev_b32 v22, 5, v1
        s_cmp_lg_u32 s55, 0
        s_cbranch_scc1 L_nosig
        s_add_u32 s46, s16, s35
        s_addc_u32 s47, s17, 0
        s_mov_b32 s48, 1
        s_waitcnt vmcnt({6 if self.vtouch else 5})
        s_atomic_add s48, s[46:47], 0x0
        L_nosig:
        v_and_b32 v7, 15, v1
        v_lshrrev_b32 v13, 2, v7
        v_lshrrev_b32 v2, 3, v1
        v_and_b32 v4, 7, v1
        v_lshlrev_b32 v4, 4, v4
        v_lshl_add_u32 v2, v2, 10, v4
        s_mul_i32 s41, s22, {CS}
        s_add_u32 s41, s41, {WS_CNT}
        v_mul_u32_u24 v30, {8*CS}, v1
        v_add_u32 v30, s41, v30
        v_lshlrev_b32 v15, 16, v14
        v_lshl_add_u32 v15, v13, 6, v15
        v_lshl_add_u32 v15, v6, 4, v15
        s_lshl_b32 s35, s22, 13
        s_lshl_b32 s41, s21, 8
        s_add_u32 s35, s35, s41
        v_add_u32 v15, s35, v15
        v_lshlrev_b32 v23, 5, v14
        v_lshl_add_u32 v23, v13, 9, v23
        v_lshl_add_u32 v23, v6, 7, v23
        s_lshl_b32 s35, s54, 13
        v_add_u32 v23, s35, v23
        v_add_u32 v29, 0x1000, v23
        v_lshl_add_u32 v13, v6, 3, v13
        v_lshlrev_b32 v13, 7, v13
        v_lshl_add_u32 v13, v14, 3, v13
        s_lshl_b32 s35, s56, 10
        s_add_u32 s35, s35, {WS_P1}
        v_add_u32 v20, s35, v3
        s_lshl_b32 s35, s56, 7
        s_add_u32 s35, s35, {WS_ML}
        v_add_u32 v21, s35, v3
        s_and_b32 s38, s21, 3
        s_lshl_b32 s39, s22, 2
        s_add_u32 s38, s38, s39
        s_lshr_b32 s39, s21, 2
        s_lshl_b32 s35, s38, 3
        s_add_u32 s35, s35, s39
        s_lshl_b32 s35, s35, 10
        s_add_u32 s35, s35, {WS_P2}
        v_add_u32 v12, s35, v3
        s_mov_b32 s49, 0
        L_waitw:
        ds_read_b128 v[16:19], v5 offset:{LDS_WF}
        s_add_u32 s49, s49, 1
        s_waitcnt lgkmcnt(0)
        v_max3_u32 v16, v16, v17, v18
        v_max_u32 v16, v16, v19
        v_cmp_eq_u32 vcc, -1, v16
        s_cbranch_vccz L_havew
        s_cmp_lt_u32 s49, {SPIN_MAX * 16}
        s_cbranch_scc1 L_waitw
        L_havew:
        s_mov_b64 exec, 0xff
        global_load_dword v24, v22, s[16:17] sc1
        s_mov_b64 exec, -1
        s_waitcnt vmcnt(2)
        """)
        self.stamp(1)
        def rd(k):
            t, nt = k // 4, k % 4
            r = WR + 4 * k
            A(f"ds_read_b64_tr_b16 v[{r}:{r+1}], v13 offset:{LDS_W + t*4096 + nt*32}")
            A(f"ds_read_b64_tr_b16 v[{r+2}:{r+3}], v13 offset:{LDS_W + t*4096 + nt*32 + 512}")
        for k in range(6): rd(k)
        for k in range(16):
            t, nt = k // 4, k % 4
            A(f"s_waitcnt lgkmcnt({2*min(5, 15-k)})")
            c = QA + 4 * nt
            A(f"v_mfma_f32_16x16x32_bf16 v[{c}:{c+3}], v[{WR+4*k}:{WR+4*k+3}], v[{XR+4*t}:{XR+4*t+3}], {'0' if t == 0 else f'v[{c}:{c+3}]'}")
            if k + 6 < 16: rd(k + 6)
        A("s_nop 5")
        for nt in range(1, 4):
            for r in range(4):
                A(f"v_mov_b32_dpp v{QA+r}, v{QA+4*nt+r} quad_perm:[0,1,2,3] row_mask:0xf bank_mask:{1<<nt:#x}")
        self.jit(1)
        A(f"global_store_dwordx4 v15, v[{QA}:{QA+3}], s[18:19]")
        if self.cleanq: A("v_mov_b32 v176, v15")
        self.stamp(2)
        A(f"""
        global_store_dwordx4 v12, v[8:11], s[18:19] sc1
        global_store_dwordx4 v20, v[8:11], s[18:19]
        s_mov_b64 exec, 0xff
        global_store_dwordx4 v21, v[8:11], s[18:19]
        s_getreg_b32 s59, hwreg(HW_REG_XCC_ID, 0, 3)
        s_lshl_b32 s59, s59, 2
        s_lshl_b32 s48, 1, s59
        s_add_u32 s46, s18, s52
        s_addc_u32 s47, s19, 0
        s_mov_b32 s49, 0
        s_branch L_chkflag
        L_pollflag:
        s_sleep {self.fsleep}
        global_load_dword v24, v22, s[16:17] sc1
        L_chkflag:
        s_add_u32 s49, s49, 1
        s_waitcnt vmcnt(0)
        v_cmp_gt_u32 vcc, 4, v24
        s_cbranch_vccz L_gotflag
        s_cmp_lt_u32 s49, {SPIN_MAX}
        s_cbranch_scc1 L_pollflag
        L_gotflag:
        s_atomic_add s48, s[46:47], 0x0
        s_mov_b64 exec, -1
        s_lshl_b32 s35, s38, 17
        s_lshl_b32 s41, s39, 7
        s_add_u32 s35, s35, s41
        s_add_u32 s24, s12, s35
        s_addc_u32 s25, s13, 0
        s_sub_u32 s26, 0x400000, s35
        s_mov_b32 m0, {LDS_W}
        s_mov_b32 s33, 0
        """)
        for i in range(self.wofirst):
            A(f"""
            buffer_load_dwordx4 v2, s[24:27], s33 offen {wpol} lds
            s_add_u32 m0, m0, 0x400
            s_add_u32 s33, s33, 0x2000
            s_waitcnt vmcnt(0)
            """)
        A(f"""
        s_mov_b64 exec, 15
        s_mov_b32 s49, 0
        s_branch L_pollq1
        L_pollq:
        s_sleep {self.csleep}
        L_pollq1:
        global_load_dword v24, v30, s[18:19] sc1
        s_add_u32 s49, s49, 1
        s_waitcnt vmcnt(0)
        """)
        self.nibble_sum(25, 24, 26)
        A(f"""
        v_cmp_ne_u32 vcc, 8, v25
        s_cbranch_vccz L_gotq
        s_cmp_lt_u32 s49, {SPIN_MAX}
        s_cbranch_scc1 L_pollq
        L_gotq:
        s_lshl_b32 s48, 8, s59
        v_cmp_ne_u32 vcc, s48, v24
        s_mov_b32 s59, 1
        s_mov_b64 exec, -1
        {"s_cbranch_vccz L_near" if not self.forcefar else ""}
        s_mov_b32 s59, 0
        global_store_dwordx4 v15, v[{QA}:{QA+3}], s[18:19] sc1
        global_store_dwordx4 v20, v[8:11], s[18:19] sc1
        s_mov_b64 exec, 0xff
        global_store_dwordx4 v21, v[8:11], s[18:19] sc1
        s_mov_b64 exec, 15
        s_mov_b32 s48, 1
        s_waitcnt vmcnt(0)
        s_atomic_add s48, s[46:47], 0x4
        L_pollq2:
        s_sleep 32
        global_load_dword v24, v30, s[18:19] offset:4 sc1
        s_add_u32 s49, s49, 1
        s_waitcnt vmcnt(0)
        v_cmp_ne_u32 vcc, 8, v24
        s_cbranch_vccz L_gotq2
        s_cmp_lt_u32 s49, {SPIN_MAX}
        s_cbranch_scc1 L_pollq2
        L_gotq2:
        s_mov_b64 exec, -1
        L_near:
        """)
        for kq in range(4):
            for e in range(2):
                r = WR + 8 * kq + 4 * e
                A(f"global_load_dwordx4 v[{r}:{r+3}], v{23 if kq < 2 else 29}, s[18:19] offset:{(kq % 2) * 2048 + 16 * e} sc1")
        A("s_waitcnt vmcnt(4)")
        for j in range(8): A(f"v_add_f32 v{WR+j}, v{WR+j}, v{WR+8+j}")
        A("s_waitcnt vmcnt(0)")
        for j in range(8): A(f"v_add_f32 v{WR+16+j}, v{WR+16+j}, v{WR+24+j}")
        for j in range(8): A(f"v_add_f32 v{WR+j}, v{WR+j}, v{WR+16+j}")
        for j in range(4): A(f"v_cvt_pk_bf16_f32 v{24+j}, v{WR+2*j}, v{WR+2*j+1}")
        for j in range(4): A(f"v_min_u32 v{24+j}, -2, v{24+j}")
        A(f"ds_write_b128 v3, v[24:27] offset:{LDS_Q}")
        self.stamp(3)
        if self.stamps: A("s_mov_b32 s57, s49")
        A("s_branch L_helper2\n@@END\n@@BEGIN_HMID")
        if self.align: A(".p2align 12")
        A("L_helper2:")
        self.jit(4)
        self.stamp(4)
        A(f"""
        L_wo:
        s_waitcnt vmcnt({self.wopace})
        buffer_load_dwordx4 v2, s[24:27], s33 offen {wpol} lds
        s_add_u32 m0, m0, 0x400
        s_add_u32 s33, s33, 0x2000
        s_cmp_lt_u32 s33, 0x20000
        s_cbranch_scc1 L_wo
        ; wait for all first reports: every output partial slot is empty
        v_mul_u32_u24 v22, {CS}, v1
        v_add_u32 v22, {WS_CNT}, v22
        s_mov_b32 s49, 0
        s_mov_b32 exec_hi, 0
        L_pollall:
        global_load_dword v24, v22, s[18:19] sc1
        s_add_u32 s49, s49, 1
        s_waitcnt vmcnt(0)
        """)
        self.nibble_sum(25, 24, 26)
        A(f"""
        v_cmp_ne_u32 vcc, 8, v25
        s_cbranch_vccz L_gotall
        s_sleep 32
        s_cmp_lt_u32 s49, {SPIN_MAX}
        s_cbranch_scc1 L_pollall
        L_gotall:
        s_mov_b64 exec, -1
        v_mov_b32 v25, s59
        ds_write_b32 v5, v25 offset:{LDS_FLAG+4}
        s_cmp_eq_u32 s39, s22
        s_cselect_b32 s59, s59, 0
        s_and_b32 s41, s38, 3
        v_lshrrev_b32 v15, 2, v7
        v_lshlrev_b32 v15, 16, v15
        v_lshl_add_u32 v15, v14, 10, v15
        v_lshl_add_u32 v15, v6, 4, v15
        s_lshl_b32 s35, s22, 13
        s_lshl_b32 s50, s41, 8
        s_add_u32 s35, s35, s50
        s_add_u32 s35, s35, {WS_P1}
        v_add_u32 v15, s35, v15
        v_add_u32 v16, 0x1000, v15
        v_and_b32 v17, 7, v1
        v_lshlrev_b32 v17, 7, v17
        v_lshl_add_u32 v17, v6, 13, v17
        s_lshl_b32 s35, s22, 10
        s_lshl_b32 s50, s41, 3
        s_add_u32 s35, s35, s50
        s_add_u32 s35, s35, {WS_ML}
        v_add_u32 v17, s35, v17
        v_lshrrev_b32 v18, 1, v1
        v_lshlrev_b32 v18, 13, v18
        v_and_b32 v19, 1, v1
        v_lshl_add_u32 v18, v19, 4, v18
        s_lshl_b32 s35, s22, 10
        s_lshl_b32 s50, s21, 5
        s_add_u32 s35, s35, s50
        s_add_u32 s35, s35, {WS_P2}
        v_add_u32 v18, s35, v18
        v_and_b32 v19, 1, v6
        v_lshlrev_b32 v19, 6, v19
        v_lshrrev_b32 v20, 1, v6
        v_lshl_add_u32 v19, v20, 5, v19
        s_lshr_b32 s35, s21, 3
        s_lshl_b32 s35, s35, 10
        s_lshl_b32 s50, s22, 7
        s_add_u32 s35, s35, s50
        s_lshl_b32 s50, s55, 2
        s_add_u32 s35, s35, s50
        v_add_u32 v19, s35, v19
        """)
        BR, AR, CR = 32, 96, 128
        for t in range(4):
            for nt in range(4): rd(4 * t + nt)
            A("s_waitcnt lgkmcnt(0)")
        A("s_mov_b32 s49, 0\ns_waitcnt lgkmcnt(0)\ns_branch L_helper3\n@@END\n@@BEGIN_HTAIL")
        def poll1_loads():
            A("global_load_dwordx2 v[20:21], v17, s[18:19] sc1")
            for u in range(2):
                for t in range(4):
                    r = AR + 16 * u + 4 * t
                    A(f"global_load_dwordx4 v[{r}:{r+3}], v{15+u}, s[18:19] offset:{64*t} sc1")
        A("L_helper4:\ns_barrier")
        if self.nopoll:
            A("s_barrier")
            for i in range(5, 10): self.stamp(i)
            self.stamp_out(10)
            A("s_endpgm")
        poll1_loads()
        A("s_barrier")
        self.stamp(5)
        A("s_branch L_chk1\nL_poll1:")
        if self.t1: A(f"s_sleep {self.t1}")
        poll1_loads()
        A("L_chk1:\ns_add_u32 s49, s49, 1\ns_waitcnt vmcnt(8)\nv_max_u32 v22, v20, v21")
        for k in range(8):
            r = AR + 4 * k
            A(f"s_waitcnt vmcnt({7-k})")
            A(f"v_max3_u32 v22, v22, v{r}, v{r+1}")
            A(f"v_max3_u32 v22, v22, v{r+2}, v{r+3}")
        A(f"""
        v_cmp_eq_u32 vcc, -1, v22
        s_cmp_ge_u32 s49, {SPIN_MAX}
        s_cbranch_scc1 L_got1
        s_and_b64 exec, exec, vcc
        s_cbranch_scc1 L_poll1
        L_got1:
        s_mov_b64 exec, -1
        """)
        self.stamp(6)
        wl = [
            "v_max_f32_dpp v22, v20, v20 row_ror:1 row_mask:0xf bank_mask:0xf",
            "v_max_f32_dpp v22, v22, v22 row_ror:2 row_mask:0xf bank_mask:0xf",
            "v_max_f32_dpp v22, v22, v22 row_ror:4 row_mask:0xf bank_mask:0xf",
            "v_sub_f32 v22, v20, v22",
            "v_exp_f32 v22, v22",
            "v_mul_f32 v23, v22, v21",
            "v_add_f32_dpp v23, v23, v23 row_ror:1 row_mask:0xf bank_mask:0xf",
            "v_add_f32_dpp v23, v23, v23 row_ror:2 row_mask:0xf bank_mask:0xf",
            "v_add_f32_dpp v23, v23, v23 row_ror:4 row_mask:0xf bank_mask:0xf",
            "v_rcp_f32 v23, v23",
            "v_mul_f32 v22, v22, v23",
        ]
        def fm(u, r, nt):
            c = CR + 16 * u + 4 * nt + r
            op = "v_mul_f32_dpp" if (u == 0 and r == 0) else "v_fmac_f32_dpp"
            return f"{op} v{24+nt}, v22, v{c} row_newbcast:{4*u+r} row_mask:0xf bank_mask:0xf"
        f0 = [fm(0, r, nt) for r in range(4) for nt in range(4)]
        k = 0
        for u in range(2):
            for t in range(4):
                for nt in range(4):
                    a, b, c = AR + 16 * u + 4 * t, BR + 16 * t + 4 * nt, CR + 16 * u + 4 * nt
                    A(f"v_mfma_f32_16x16x32_bf16 v[{c}:{c+3}], v[{a}:{a+3}], v[{b}:{b+3}], {'0' if t == 0 else f'v[{c}:{c+3}]'}")
                    k += 1
                    if wl: A(wl.pop(0) + "\ns_nop 0")
                    elif k >= 24 and f0:
                        A(f0.pop(0)); A(f0.pop(0))
        assert not wl
        for x in f0: A(x)
        A("s_nop 4")
        for r in range(4):
            for nt in range(4): A(fm(1, r, nt))
        self.jit(3)
        A("s_cmp_eq_u32 s59, 1\ns_mov_b32 s49, 0")
        for nt in range(4): A(f"v_min_u32 v{24+nt}, -2, v{24+nt}")
        A(f"""
        s_cbranch_scc1 L_p2_near
        global_store_dwordx4 v12, v[24:27], s[18:19] sc1
        s_branch L_p2_done
        L_p2_near:
        global_store_dwordx4 v12, v[24:27], s[18:19]
        L_p2_done:
        {"s_barrier" if self.clean else ""}
        {f"global_store_dwordx4 v176, v[{QA}:{QA+3}], s[18:19] sc1" if self.cleanq else ""}
        """)
        self.stamp(7)
        REDO = f"""s_cmp_lg_u32 s49, {self.nre}
            s_cbranch_scc1 L_poll2a
            s_cmp_lg_u32 s59, 1
            s_cbranch_scc1 L_poll2a
            s_mov_b64 s[40:41], exec
            s_mov_b64 exec, -1
            global_store_dwordx4 v12, v[24:27], s[18:19] sc1
            s_mov_b64 exec, s[40:41]
            s_mov_b32 s59, 0"""
        REDO2 = """s_cmp_lg_u32 s59, 1
            s_cbranch_scc1 L_sum2
            global_store_dwordx4 v12, v[24:27], s[18:19] sc1
            L_sum2:"""
        if self.p2depth == 1:
            A(f"""
            s_branch L_poll2a
            L_poll2:
            {"s_sleep %d" % self.t2 if self.t2 else ""}
            {REDO if self.clean else ""}
            L_poll2a:
            global_load_dwordx4 v[28:31], v18, s[18:19] sc1
            s_add_u32 s49, s49, 1
            s_waitcnt vmcnt(0)
            v_max3_u32 v22, v28, v29, v30
            v_max_u32 v22, v22, v31
            v_cmp_eq_u32 vcc, -1, v22
            s_cmp_ge_u32 s49, {SPIN_MAX}
            s_cbranch_scc1 L_got2
            s_and_b64 exec, exec, vcc
            s_cbranch_scc1 L_poll2
            L_got2:
            s_mov_b64 exec, -1
            {REDO2 if self.clean else ""}
            """)
        else:
            A(f"""
            global_load_dwordx4 v[28:31], v18, s[18:19] sc1
            L_poll2:
            global_load_dwordx4 v[32:35], v18, s[18:19] sc1
            s_add_u32 s49, s49, 1
            s_waitcnt vmcnt(1)
            v_max3_u32 v22, v28, v29, v30
            v_max_u32 v22, v22, v31
            v_cmp_eq_u32 vcc, -1, v22
            s_cbranch_vccz L_got2
            global_load_dwordx4 v[28:31], v18, s[18:19] sc1
            s_waitcnt vmcnt(1)
            v_max3_u32 v22, v32, v33, v34
            v_max_u32 v22, v22, v35
            v_cmp_eq_u32 vcc, -1, v22
            s_cmp_lt_u32 s49, {SPIN_MAX}
            s_cbranch_vccz L_got2b
            s_cbranch_scc1 L_poll2
            L_got2b:
            v_mov_b32 v36, v32
            v_mov_b32 v37, v33
            v_mov_b32 v38, v34
            v_mov_b32 v39, v35
            s_branch L_sum2
            L_got2:
            v_mov_b32 v36, v28
            v_mov_b32 v37, v29
            v_mov_b32 v38, v30
            v_mov_b32 v39, v31
            L_sum2:
            s_nop 0
            """)
        self.stamp(8)
        z = 28 if self.p2depth == 1 else 36
        A(f"""
        v_permlane32_swap_b32 v{z}, v{z+1}
        v_permlane32_swap_b32 v{z+2}, v{z+3}
        s_nop 1
        v_add_f32 v{z}, v{z}, v{z+1}
        v_add_f32 v{z+2}, v{z+2}, v{z+3}
        s_nop 1
        v_permlane16_swap_b32 v{z}, v{z+2}
        s_nop 1
        v_add_f32 v{z}, v{z}, v{z+2}
        s_nop 1
        v_add_f32_dpp v{z}, v{z}, v{z} row_ror:2 row_mask:0xf bank_mask:0xf
        s_nop 1
        v_add_f32_dpp v{z}, v{z}, v{z} row_ror:4 row_mask:0xf bank_mask:0xf
        s_nop 1
        v_add_f32_dpp v{z}, v{z}, v{z} row_ror:8 row_mask:0xf bank_mask:0xf
        s_nop 1
        v_mov_b32_dpp v{z+1}, v{z} quad_perm:[1,1,1,1] row_mask:0xf bank_mask:0xf
        s_mov_b32 exec_lo, 0x00010001
        s_mov_b32 exec_hi, 0x00010001
        v_cvt_pk_bf16_f32 v{z}, v{z}, v{z+1}
        global_store_dword v19, v{z}, s[14:15] {"sc1" if self.clean else ""}
        """)
        self.stamp(9)
        self.stamp_out(10)
        A("L_end:\ns_endpgm\n@@END")

    def build(self):
        A = self.A
        self.L.append(HEADER.rstrip("\n"))
        self.L.append(f"; @launch grid=(256,1,1) block=(320,1,1) lds={LDS_SIZE}")
        A('.amdgcn_target "amdgcn-amd-amdhsa--gfx950"')
        A(".text")
        if self.align:
            self.L.append("; unreached padding: puts the entry at the start of a 4 KiB page (instruction prefetch stops at page ends)")
            A(".p2align 12\n.fill 832, 4, 0xbf810000")
        A(f".globl {NAME}\n.p2align 8\n.type {NAME},@function\n{NAME}:")
        A("""
        s_cmp_ge_u32 s2, 256
        s_cbranch_scc1 L_end
        s_load_dwordx16 s[4:19], s[0:1], 0
        """)
        self.stamp(0)
        self.jit(0)
        A("""
        v_lshrrev_b32 v2, 6, v0
        v_and_b32 v1, 63, v0
        s_lshr_b32 s21, s2, 3
        v_readfirstlane_b32 s20, v2
        s_and_b32 s22, s2, 7
        v_lshlrev_b32 v3, 4, v1
        s_mov_b32 s27, 0x20000
        s_mov_b32 s31, 0x20000
        s_and_b32 s54, s21, 24
        s_add_u32 s54, s54, s22
        s_and_b32 s55, s21, 7
        s_lshl_b32 s56, s54, 3
        s_add_u32 s56, s56, s55
        s_lshr_b32 s53, s21, 3
        s_lshl_b32 s34, s53, 20
        s_lshl_b32 s35, s22, 10
        s_add_u32 s34, s34, s35
        s_lshl_b32 s35, s55, 7
        s_add_u32 s34, s34, s35
        s_cmp_lg_u32 s20, 0
        s_cbranch_scc1 L_stream
        """)
        head = self.L
        self.L = []; self.streamer(); st = self.L
        self.L = []; self.helper(); hl = self.L
        parts, cur = {}, None
        for line in hl:
            t = line.strip()
            if t.startswith("@@BEGIN_"): cur = t[8:]; parts[cur] = []
            elif t == "@@END": cur = None
            else: parts[cur].append(line)
        self.L = head
        for line in st:
            t = line.strip()
            if t.startswith("@@"): self.L += parts.pop(t[2:])
            else: self.L.append(line)
        self.L += parts.pop("HTAIL")
        assert not parts
        A("L_code_end:")
        nv = max(self.nv_stream, 180)
        A(f""".section .rodata,"a"
.p2align 6
.amdhsa_kernel {NAME}
  .amdhsa_next_free_vgpr {nv}
  .amdhsa_next_free_sgpr 96
  .amdhsa_accum_offset {(nv + 3) // 4 * 4}
  .amdhsa_group_segment_fixed_size 0
  .amdhsa_kernarg_size 64
  .amdhsa_user_sgpr_count 2
  .amdhsa_user_sgpr_kernarg_segment_ptr 1
  .amdhsa_system_sgpr_workgroup_id_x 1
  .amdhsa_float_denorm_mode_32 3
.end_amdhsa_kernel""")
        return "\n".join(self.L) + "\n"


if __name__ == "__main__":
    out = sys.argv[1] if len(sys.argv) > 1 else "standalone__gqa_block_cached__decode.s"
    kw = eval("dict(" + (sys.argv[2] if len(sys.argv) > 2 else "") + ")")
    open(out, "w").write(Gen(**kw).build())
```

```python
import sys, math, struct

NAME = "standalone__gqa_block_cached__decode_kernel"
HEADER = """; Kernarg layout for this problem (64 bytes, ptrs only, base s[0:1]):
;   offset  48: d_debug   256 bytes (zero at entry: first counters)
;
"""

WS_Q, WS_P1, WS_ML, WS_P2, WS_CNT, WS_STAMP = 0x0, 0x40000, 0x80000, 0x90000, 0xd0000, 0x200000
CS = 4352
LDS_W, LDS_Q, LDS_O, LDS_ML, LDS_FLAG, LDS_WF, LDS_SIZE = 0, 16384, 17408, 25600, 25728, 25744, 25760
SPIN_MAX = 40000


class Gen:
    def __init__(self, DP=5, EX=2, FR=3, W=5, WP=5, E=3, W2=7, pol="nt", wpol="nt", fsleep=16, csleep=24,
                 wofirst=2, wopace=1, ms=(), table=(0, 0, 0, 0, 1, 2, 4, 8), base=0, lagk=2, b0="first", neg=False, rk=256, w8=0, etab=None, t1=0, t2=0, nopoll=False, clean=False, cleanq=False, nre=3, vtouch=False, jitter=0, skewb=0, skewx=0, perm=None, skewtab=None, WC=None, xtab=None, cpl=3, hprio=3, sprio=0, wsleep=0, lateflag=False,
                 split=2, align=True, forcefar=False, p2depth=1, stamps=False, prog=False):
        self.__dict__.update(locals())
        self.L = []

    def A(self, s):
        for line in s.strip("\n").split("\n"):
            line = line.strip()
            if not line:
                continue
            self.L.append(line if line.endswith(":") or line.startswith(".") else "    " + line)

    def stamp(self, idx):
        if self.stamps:
            self.A(f"s_memrealtime s[{60+2*idx}:{61+2*idx}]")

    def jit(self, k):
        if self.jitter:
            self.jn = getattr(self, "jn", 0) + 1
            mul = [0x9E3779B1, 0x85EBCA77, 0xC2B2AE3D, 0x27D4EB2F, 0x165667B1, 0xD3A2646D, 0xFD7046C5, 0xB55A4F09][(k + self.jitter) % 8]
            self.A(f"""
            s_add_u32 s94, s2, {17 * self.jitter + k}
            s_mul_i32 s94, s94, {mul:#x}
            s_lshr_b32 s94, s94, 28
            s_cmp_lt_u32 s94, 12
            s_cbranch_scc1 L_j{self.jn}
            s_sub_u32 s94, s94, 11
            s_lshl_b32 s94, s94, 2
            L_jl{self.jn}:
            s_sleep 127
            s_sub_u32 s94, s94, 1
            s_cmp_lg_u32 s94, 0
            s_cbranch_scc1 L_jl{self.jn}
            L_j{self.jn}:
            """)

    def skew_code(self):
        c = ""
        if self.perm:
            km, ka = self.perm
            c += f"s_mul_i32 s93, s54, {km}\ns_and_b32 s93, s93, 15\ns_lshl_b32 s93, s93, 18\ns_add_u32 s93, s93, 0x20000\n"
            c += f"s_mul_i32 s35, s54, {ka}\ns_and_b32 s35, s35, 31\ns_lshl_b32 s35, s35, 17\ns_add_u32 s33, s33, s35\n"
        elif self.skewtab:
            tb = sum(v << (8 * i) for i, v in enumerate(self.skewtab))
            c += f"s_lshl_b32 s35, s53, 3\ns_lshr_b32 s35, {tb:#x}, s35\n"
            if self.xtab:
                tx = sum(v << (4 * i) for i, v in enumerate(self.xtab))
                c += f"s_lshl_b32 s36, s22, 2\ns_lshr_b32 s36, {tx:#x}, s36\ns_and_b32 s36, s36, 15\ns_lshl_b32 s36, s36, 1\ns_add_u32 s35, s35, s36\n"
            c += "s_and_b32 s35, s35, 31\ns_lshl_b32 s35, s35, 17\ns_add_u32 s33, s33, s35\n"
        elif self.skewb or self.skewx:
            c += f"s_mul_i32 s35, s53, {self.skewb}\n"
            if self.skewx: c += f"s_mul_i32 s36, s22, {self.skewx}\ns_add_u32 s35, s35, s36\n"
            c += "s_and_b32 s35, s35, 31\ns_lshl_b32 s35, s35, 17\ns_add_u32 s33, s33, s35\n"
        return c

    def bump(self):
        if self.perm: return "s_add_u32 s33, s33, s93\ns_and_b32 s33, s33, 0x3fffff"
        if self.skewb or self.skewx or self.skewtab: return "s_add_u32 s33, s33, 0x20000\ns_and_b32 s33, s33, 0x3fffff"
        return "s_add_u32 s33, s33, 0x20000"

    def progstamp(self):
        if self.prog:
            self.A("s_memrealtime s[80:81]\ns_mov_b32 m0, s82\ns_add_u32 s82, s82, 1\ns_waitcnt lgkmcnt(0)\nv_writelane_b32 v26, s80, m0")

    def stamp_out(self, n):
        if not self.stamps:
            return
        A = self.A
        A("s_waitcnt lgkmcnt(0)")
        A("s_mov_b64 exec, 1")
        A(f"s_mul_i32 s58, s56, 5\ns_add_u32 s58, s58, s20\ns_lshl_b32 s58, s58, 6\ns_add_u32 s58, s58, {WS_STAMP}")
        A("v_mov_b32 v1, s58")
        for i in range(n):
            A(f"v_mov_b32 v2, s{60+2*i}\nglobal_store_dword v1, v2, s[18:19] offset:{4*i}")
        A("v_mov_b32 v2, s57\nglobal_store_dword v1, v2, s[18:19] offset:56")
        A("s_getreg_b32 s58, hwreg(HW_REG_XCC_ID)\nv_mov_b32 v2, s58\nglobal_store_dword v1, v2, s[18:19] offset:60")

    def streamer(self):
        A, DP, EX, W, WP, E, W2, pol = self.A, self.DP, self.EX, self.W, self.WP, self.E, self.W2, self.pol
        vOK, vOV, vMA, vMB = 2, 3, 4, 5
        vQ, vO = 8, 12
        vM, vL, vMX, vT, vAL, vAO = 20, 21, 22, 23, 24, 25
        vD, vS, vP, RING = 28, 44, 48, 56
        self.nv_stream = RING + 32 * DP
        C0 = DP + EX
        assert 1 <= EX < DP and E >= 1

        def slot(ch): return ch if ch < DP else min(ch, C0) - DP
        def reg(ch, k): return RING + 32 * slot(ch) + 4 * k
        st = dict(n=-4, landed=-4)

        def emit_load(ch, k):
            r = reg(ch, k)
            if k < 4: A(f"buffer_load_dwordx4 v[{r}:{r+3}], v{vOK}, s[24:27], s33 offen offset:{k*1024} {pol}")
            else: A(f"buffer_load_dwordx4 v[{r}:{r+3}], v{vOV}, s[28:31], s33 offen offset:{(k-4)*1024} {pol}")
            if k == 7: self.progstamp()

        def issue(w):
            i = st["n"]
            if i - st["landed"] >= w:
                A(f"s_waitcnt vmcnt({w-1})"); st["landed"] = i - (w - 1)
            if i < 0:
                A(f"buffer_load_dwordx4 v7, s[36:39], s40 offen {self.wpol} lds")
                if i < -1: A("s_add_u32 m0, m0, 0x400\ns_add_u32 s40, s40, 0x10000")
            else:
                if i % 8 == 0 and i > 0: A(self.bump())
                emit_load(i // 8, i % 8)
            st["n"] += 1

        def need(i):
            if st["landed"] <= i:
                A(f"s_waitcnt vmcnt({st['n'] - 1 - i})"); st["landed"] = i + 1

        def qk(ch, c):
            A(f"v_mfma_f32_16x16x32_bf16 v[{vD+4*c}:{vD+4*c+3}], v[{reg(ch,c)}:{reg(ch,c)+3}], v[{vQ}:{vQ+3}], 0")

        def pv(ch, c):
            r = reg(ch, 4 + c)
            A(f"v_mfma_f32_16x16x16_bf16 v[{vO}:{vO+3}], v[{vP+2*c}:{vP+2*c+1}], v[{r}:{r+1}], v[{vO}:{vO+3}]")
            A(f"v_mfma_f32_16x16x16_bf16 v[{vO+4}:{vO+7}], v[{vP+2*c}:{vP+2*c+1}], v[{r+2}:{r+3}], v[{vO+4}:{vO+7}]")

        def scores():
            A("s_nop 5")
            for c in range(4):
                A(f"v_mov_b32_dpp v{vS+c}, v{vD+4*c} quad_perm:[0,0,0,0] row_mask:0xf bank_mask:0xf")
            for r in range(1, 4):
                for c in range(4):
                    A(f"v_add_f32_dpp v{vS+c}, v{vD+4*c+r}, v{vS+c} quad_perm:[{r},{r},{r},{r}] row_mask:0xf bank_mask:0xf")
            A(f"""
            v_max3_f32 v{vMX}, v{vS}, v{vS+1}, v{vS+2}
            v_max_f32 v{vMX}, v{vMX}, v{vS+3}
            v_mul_f32 v{vMX}, s42, v{vMX}
            """)

        def probs():
            for c in range(4): A(f"v_fma_f32 v{vS+c}, v{vS+c}, s42, -v{vM}")
            for c in range(4): A(f"v_exp_f32 v{vS+c}, v{vS+c}")
            for c in range(4): A(f"v_cvt_pk_bf16_f32 v{vP+2*c+1}, v{vS+c}, v{vS+c}")
            A(f"v_add_f32 v{vS}, v{vS}, v{vS+1}")
            A(f"v_add_f32 v{vS+2}, v{vS+2}, v{vS+3}")
            for c in range(4):
                A(f"v_and_b32 v{vP+2*c}, v{vP+2*c+1}, v{vMA}")
                A(f"v_and_b32 v{vP+2*c+1}, v{vP+2*c+1}, v{vMB}")
            A(f"v_add_f32 v{vL}, v{vL}, v{vS}")
            A(f"v_add_f32 v{vL}, v{vL}, v{vS+2}")

        def softmax(tag):
            scores()
            A(f"""
            v_cmp_gt_f32 vcc, v{vMX}, v{vM}
            s_cbranch_vccz L_keep{tag}
            s_call_b64 s[44:45], L_rescale
            L_keep{tag}:
            """)
            probs()

        def wavemax():
            A(f"""
            v_mov_b32 v{vT}, v{vMX}
            s_nop 1
            v_permlane16_swap_b32 v{vMX}, v{vT}
            s_nop 1
            v_max_f32 v{vMX}, v{vMX}, v{vT}
            v_mov_b32 v{vT}, v{vMX}
            s_nop 1
            v_permlane32_swap_b32 v{vMX}, v{vT}
            s_nop 1
            v_max3_f32 v{vMX}, v{vMX}, v{vT}, v{vM}
            """)

        def rescale():
            A(f"""
            v_sub_f32 v{vAL}, v{vM}, v{vMX}
            v_exp_f32 v{vAL}, v{vAL}
            v_mov_b32 v{vM}, v{vMX}
            v_mul_f32 v{vL}, v{vL}, v{vAL}
            s_nop 0
            """)
            for g in range(4):
                A(f"v_mov_b32_dpp v{vAO}, v{vAL} row_newbcast:{4*g} row_mask:{1<<g:#x} bank_mask:0xf")
                A("s_nop 1")
            for r in range(8): A(f"v_mul_f32 v{vO+r}, v{vO+r}, v{vAO}")

        A("@@HHEAD")
        A(f"""
        L_stream:
        {"s_setprio %d" % self.sprio if self.sprio else ""}
        v_and_b32 v6, 3, v1
        v_lshlrev_b32 v{vOK}, 4, v6
        v_bfe_u32 v7, v1, 2, 2
        v_lshl_add_u32 v{vOK}, v7, 8, v{vOK}
        v_lshrrev_b32 v7, 4, v1
        v_lshl_add_u32 v{vOK}, v7, 6, v{vOK}
        v_lshrrev_b32 v7, 3, v1
        v_lshlrev_b32 v7, 13, v7
        v_and_b32 v8, 7, v1
        v_lshl_add_u32 v7, v8, 4, v7
        s_sub_u32 s40, s20, 1
        s_lshl_b32 m0, s40, 12
        s_lshl_b32 s33, s55, 2
        s_add_u32 s33, s33, s40
        s_lshl_b32 s33, s33, 12
        {self.skew_code()}
        s_lshl_b32 s40, s40, 18
        s_sub_u32 s38, 0x400000, s34
        s_mov_b32 s39, 0x20000
        s_lshl_b32 s35, s54, 22
        s_mov_b32 s26, 0x400000
        s_mov_b32 s30, 0x400000
        {"s_mov_b32 s82, 0" if self.prog else ""}
        {"v_mov_b32 v26, 0" if self.prog else ""}
        s_waitcnt lgkmcnt(0)
        s_add_u32 s36, s10, s34
        s_addc_u32 s37, s11, 0
        s_add_u32 s24, s6, s35
        s_addc_u32 s25, s7, 0
        s_add_u32 s28, s8, s35
        s_addc_u32 s29, s9, 0
        """)
        told = False
        if self.b0 == "first": A("s_barrier")
        for i in range(-4, 8 * DP):
            issue(WP)
            if st["landed"] >= 0 and not told:
                A(f"s_mov_b64 exec, 1\nds_write_b32 v{vP}, v{vP} offset:{LDS_WF}\ns_mov_b64 exec, -1"); told = True
            if i == WP - 5:
                bits = struct.unpack("<I", struct.pack("<f", math.log2(math.e) / math.sqrt(128.0)))[0]
                A(f"""
                v_mov_b32 v7, 0xffff
                v_mov_b32 v{vT}, 0xffff0000
                v_cmp_eq_u32 vcc, 0, v6
                v_cmp_eq_u32 s[46:47], 1, v6
                v_cmp_eq_u32 s[48:49], 2, v6
                v_cmp_eq_u32 s[50:51], 3, v6
                v_cndmask_b32 v{vMA}, 0, v7, vcc
                v_cndmask_b32 v{vMA}, v{vMA}, v{vT}, s[46:47]
                v_cndmask_b32 v{vMB}, 0, v7, s[48:49]
                v_cndmask_b32 v{vMB}, v{vMB}, v{vT}, s[50:51]
                v_mov_b32 v{vM}, 0xff7fffff
                v_mov_b32 v{vL}, 0
                """)
                for r in range(8): A(f"v_mov_b32 v{vO+r}, 0")
                A(f"s_mov_b32 s42, {bits:#x}")
                if self.stamps: A("s_mov_b32 s57, 0")
                A(f"s_lshl_b32 s40, s20, 2\ns_sub_u32 s40, s40, 4\nv_mov_b32 v{vP}, s40")
                if self.b0 != "first": A("s_barrier")
        self.stamp(1)
        A("s_branch L_stream2")
        A("@@HFRONT")
        A("L_rescale:")
        wavemax()
        rescale()
        A("s_setpc_b64 s[44:45]")
        A(f"""
        L_stream2:
        s_mov_b32 s43, 0
        L_waitq:
        ds_read_b128 v[{vQ}:{vQ+3}], v{vOV} offset:{LDS_Q}
        s_add_u32 s43, s43, 1
        s_waitcnt lgkmcnt(0)
        v_max3_u32 v{vT}, v{vQ}, v{vQ+1}, v{vQ+2}
        v_max_u32 v{vT}, v{vT}, v{vQ+3}
        v_cmp_eq_u32 vcc, -1, v{vT}
        s_cbranch_vccz L_haveq
        s_sleep 1
        s_cmp_lt_u32 s43, {SPIN_MAX * 16}
        s_cbranch_scc1 L_waitq
        L_haveq:
        """)
        self.stamp(2)
        target = 8 * C0 + W
        todo = target - st["n"]
        points, done = 2 * C0, 0
        def free_limit(ch, half):
            lim = st["n"]
            while lim < target:
                prev = lim // 8 - DP
                if prev < ch or (prev == ch and lim % 8 < 4 * half): lim += 1
                else: break
            return lim
        for ch in range(C0):
            if ch == self.split:
                A("s_branch L_stream3\n@@HMID\nL_stream3:")
            for half in (1, 2):
                for c in range(4):
                    need(8 * ch + 4 * (half - 1) + c)
                    (qk if half == 1 else pv)(ch, c)
                done += 1
                want = 8 * DP + self.FR + -(-(todo - self.FR) * done // points)
                lim = free_limit(ch, half)
                while st["n"] < min(want, lim): issue(self.WC or W)
                if half == 1: softmax(f"p{ch}")
        assert st["n"] == target, (st, target)
        A(f"s_mov_b32 s43, {32 - C0}")
        if self.ms:
            spread = [0x00, 0x10, 0x11, 0x49, 0x55, 0x6d, 0x77, 0x7f, 0xff]
            enc = lambda n: spread[n] if n >= 0 else spread[-n] << 8
            if self.etab:
                assert not self.neg
                tb = sum((spread[n] | (e << 8)) << (16 * i) for i, (n, e) in enumerate(zip(self.table, self.etab)))
                enc = lambda n: spread[n] | (E << 8)
            else:
                tb = sum(enc(n) << (16 * i) for i, n in enumerate(self.table))
            mm = 0
            for m in self.ms: mm |= (1 << m) | (1 << (m - self.lagk)) | (1 << (m - self.lagk - 1))
            A(f"""
            s_mov_b32 s52, {enc(self.base)}
            s_mov_b32 s53, {mm:#x}
            s_mov_b32 s46, 0
            s_mov_b32 s41, {self.rk + 32}
            s_mul_i32 s35, s21, {CS}
            s_add_u32 s35, s35, {WS_CNT}
            s_add_u32 s48, s18, s35
            s_addc_u32 s49, s19, 0
            """)
            for i in range(4): A(f"s_mov_b32 s{84+i}, {(tb >> (32*i)) & 0xffffffff:#x}")

        def loop(label, w, until, ctl):
            A(f"{label}:")
            def iss(k):
                if k + w == 8: A(self.bump() + "\ns_sub_u32 s43, s43, 1")
                emit_load(C0, (k + w) % 8)
            for k in range(8):
                if ctl:
                    A(f"s_bitcmp1_b32 s52, {k}\ns_cbranch_scc1 {label}_w{k}")
                    if self.neg and k in (0, 4):
                        A(f"s_bitcmp0_b32 s52, {k+8}\ns_cbranch_scc1 {label}_v{k}\ns_waitcnt vmcnt({w-2})\n{label}_v{k}:")
                    A(f"s_waitcnt vmcnt({w-1})\n{label}_w{k}:")
                    iss(k)
                    A(f"s_waitcnt vmcnt({w})")
                elif label == "L_loop" and ([0x00, 0x10, 0x11, 0x49, 0x55, 0x6d, 0x77, 0x7f, 0xff][self.w8] >> k) & 1:
                    iss(k)
                    A(f"s_waitcnt vmcnt({w})")
                else:
                    A(f"s_waitcnt vmcnt({w-1})")
                    if w < 8: iss(k)
                if k < 4: qk(C0, k)
                else: pv(C0, k - 4)
                if w == 8: iss(k)
                if k == 3: softmax(label)
            if ctl:
                A(f"s_bitcmp1_b32 s53, s43\ns_cbranch_scc0 {label}_m\ns_call_b64 s[44:45], L_rank\n{label}_m:")
            if ctl and self.etab:
                A(f"s_lshr_b32 s50, s52, 8\ns_cmp_gt_u32 s43, s50\ns_cbranch_scc1 {label}")
            else:
                A(f"s_cmp_lg_u32 s43, {until}\ns_cbranch_scc1 {label}")
        loop("L_loop", W, E, bool(self.ms))
        A("s_branch L_page2")
        if self.ms:
            A(f"""
            ; At a milestone wave 1 counts itself in among its seven peers (same a); how many were there first decides
            L_rank:
            s_add_u32 s46, s46, 1
            v_mov_b32 v{vT}, 0
            s_cmp_eq_u32 s46, 3
            s_cbranch_scc1 L_rank_take
            s_cmp_lg_u32 s20, 1
            s_cbranch_scc1 L_rank_ret
            s_cmp_eq_u32 s46, 2
            s_cbranch_scc1 L_rank_use
            s_mov_b32 s47, 1
            s_atomic_add s47, s[48:49], s41 glc
            s_add_u32 s41, s41, 4
            L_rank_ret:
            s_setpc_b64 s[44:45]
            L_rank_use:
            s_waitcnt lgkmcnt(0)
            s_and_b32 s47, s47, 7
            s_lshr_b32 m0, s47, 1
            s_lshl_b32 s47, s47, 4
            s_movrels_b32 s36, s84
            s_lshr_b32 s52, s36, s47
            s_and_b32 s52, s52, 0xffff
            v_mov_b32 v{vMX}, s52
            ds_write_b32 v{vT}, v{vMX} offset:{LDS_FLAG+8}
            s_setpc_b64 s[44:45]
            L_rank_take:
            ds_read_b32 v{vT}, v{vT} offset:{LDS_FLAG+8}
            s_mov_b32 s46, 0
            s_waitcnt lgkmcnt(0)
            v_readfirstlane_b32 s47, v{vT}
            s_cmp_eq_u32 s47, -1
            s_cselect_b32 s52, s52, s47
            s_setpc_b64 s[44:45]
            """)
        if self.align is True: A(".p2align 12")
        A("L_helper3:\ns_branch L_helper4")
        A("L_page2:")
        for k in range(W, W2): emit_load(C0, k)
        a0, a1, a2, a3, a4, a5, a6, a7 = range(RING, RING + 8)
        A(f"""
        s_sub_u32 s34, s20, 1
        v_lshrrev_b32 v6, 4, v1
        v_and_b32 v7, 15, v1
        v_lshlrev_b32 v{a0}, 9, v6
        v_lshl_add_u32 v{a0}, v7, 5, v{a0}
        s_lshl_b32 s35, s34, 11
        v_add_u32 v{a0}, s35, v{a0}
        s_lshl_b32 s41, s34, 2
        v_lshl_add_u32 v{a1}, v1, 2, s41
        v_and_b32 v{a2}, 12, v1
        v_lshlrev_b32 v{a2}, 2, v{a2}
        s_lshl_b32 s35, s34, 9
        v_lshl_add_u32 v{a3}, v1, 3, s35
        s_lshl_b32 s35, s34, 4
        v_mov_b32 v{a4}, s35
        s_lshl_b32 s35, s56, 10
        s_lshl_b32 s36, s34, 8
        s_add_u32 s35, s35, s36
        s_add_u32 s35, s35, {WS_P1}
        v_lshl_add_u32 v{a5}, v1, 2, s35
        s_lshl_b32 s35, s56, 4
        s_add_u32 s35, s35, s34
        s_lshl_b32 s35, s35, 3
        s_add_u32 s35, s35, {WS_ML}
        v_mov_b32 v{a6}, s35
        v_mov_b32 v{a7}, 0
        """)
        if self.etab:
            A("s_cmp_eq_u32 s43, 1\ns_cbranch_scc1 L_last")
            loop("L_loop2", W2, 1, False)
            A("L_last:")
        elif E > 1: loop("L_loop2", W2, 1, False)
        self.jit(2)
        for k in range(4):
            if k == 0:
                A(f"s_waitcnt vmcnt({W2-1})")
                for k2 in range(W2, 8): emit_load(C0, k2)
            else: A(f"s_waitcnt vmcnt({7-k})")
            qk(C0, k)
        scores()
        wavemax()
        A(f"""
        s_mov_b64 exec, 0x1111
        ds_write_b32 v{a1}, v{vMX} offset:{LDS_ML}
        s_mov_b64 exec, -1
        s_waitcnt lgkmcnt(0)
        s_barrier
        ds_read_b128 v[28:31], v{a2} offset:{LDS_ML}
        ds_read_b32 v{a7}, v{a7} offset:{LDS_FLAG+4}
        s_waitcnt lgkmcnt(1)
        v_max3_f32 v{vMX}, v28, v29, v30
        v_max_f32 v{vMX}, v{vMX}, v31
        """)
        rescale()
        probs()
        A(f"""
        v_mov_b32 v{vT}, v{vL}
        v_readlane_b32 s36, v{vM}, s41
        s_waitcnt lgkmcnt(0)
        v_permlane16_swap_b32 v{vL}, v{vT}
        v_cmp_eq_u32 vcc, 1, v{a7}
        s_min_u32 s36, s36, -2
        v_add_f32 v{vL}, v{vL}, v{vT}
        v_mov_b32 v{vT}, v{vL}
        v_mov_b32 v44, s36
        s_nop 0
        v_permlane32_swap_b32 v{vL}, v{vT}
        s_nop 0
        v_add_f32 v{vL}, v{vL}, v{vT}
        s_mov_b64 exec, 0x1111
        ds_write_b32 v{a1}, v{vL} offset:{LDS_ML+64}
        s_mov_b64 exec, -1
        """)
        for c in range(4):
            A(f"s_waitcnt vmcnt({3-c})")
            pv(C0, c)
        self.stamp(3)
        A(f"""
        s_nop 6
        ds_write_b128 v{a0}, v[{vO}:{vO+3}] offset:{LDS_O}
        ds_write_b128 v{a0}, v[{vO+4}:{vO+7}] offset:{LDS_O+16}
        s_waitcnt lgkmcnt(0)
        s_barrier
        ds_read_b64 v[36:37], v{a3} offset:{LDS_O}
        ds_read_b64 v[38:39], v{a3} offset:{LDS_O+2048}
        ds_read_b64 v[40:41], v{a3} offset:{LDS_O+4096}
        ds_read_b64 v[42:43], v{a3} offset:{LDS_O+6144}
        ds_read_b128 v[32:35], v{a4} offset:{LDS_ML+64}
        s_waitcnt lgkmcnt(3)
        v_add_f32 v36, v36, v38
        v_add_f32 v37, v37, v39
        s_waitcnt lgkmcnt(1)
        v_add_f32 v40, v40, v42
        v_add_f32 v41, v41, v43
        v_add_f32 v36, v36, v40
        v_add_f32 v37, v37, v41
        v_cvt_pk_bf16_f32 v48, v36, v37
        s_waitcnt lgkmcnt(0)
        v_min_u32 v48, -2, v48
        v_add_f32 v32, v32, v33
        v_add_f32 v34, v34, v35
        v_mov_b32_dpp v49, v48 quad_perm:[1,1,1,1] row_mask:0xf bank_mask:0xf
        v_mov_b32_dpp v50, v48 quad_perm:[2,2,2,2] row_mask:0xf bank_mask:0xf
        v_mov_b32_dpp v51, v48 quad_perm:[3,3,3,3] row_mask:0xf bank_mask:0xf
        v_add_f32 v45, v32, v34
        s_mov_b32 exec_lo, 0x11111111
        s_mov_b32 exec_hi, 0x11111111
        v_min_u32 v45, -2, v45
        s_cbranch_vccz L_pub_far
        global_store_dwordx4 v{a5}, v[48:51], s[18:19]
        s_mov_b64 exec, 1
        global_store_dwordx2 v{a6}, v[44:45], s[18:19]
        {"s_memrealtime s[68:69]" if self.stamps else ""}
        {"" if self.clean else ("s_branch L_pub_done" if self.stamps else "s_endpgm")}
        {"s_barrier" if self.clean else ""}
        s_mov_b32 exec_lo, 0x11111111
        s_mov_b32 exec_hi, 0x11111111
        L_pub_far:
        global_store_dwordx4 v{a5}, v[48:51], s[18:19] sc1
        s_mov_b64 exec, 1
        global_store_dwordx2 v{a6}, v[44:45], s[18:19] sc1
        {"s_cbranch_vccnz L_pub_done" if self.stamps else ""}
        {"s_memrealtime s[68:69]" if self.stamps else ""}
        L_pub_done:
        """)
        if self.prog:
            A(f"s_mov_b64 exec, -1\ns_lshl_b32 s58, s2, 2\ns_add_u32 s58, s58, s20\ns_sub_u32 s58, s58, 1\ns_lshl_b32 s58, s58, 8\ns_add_u32 s58, s58, {WS_STAMP + 0x100000}")
            A("v_lshl_add_u32 v2, v1, 2, s58\nglobal_store_dword v2, v26, s[18:19]")
        self.stamp_out(5)
        A("s_endpgm")

    def nibble_sum(self, d, s, t):
        self.A(f"""
        v_and_b32 v{d}, 0x0f0f0f0f, v{s}
        v_lshrrev_b32 v{t}, 4, v{s}
        v_and_b32 v{t}, 0x0f0f0f0f, v{t}
        v_add_u32 v{d}, v{d}, v{t}
        v_sad_u8 v{d}, v{d}, 0, 0
        """)

    def helper(self):
        A, wpol = self.A, self.wpol
        WR, XR, QA = 32, 96, 160
        A("@@BEGIN_HHEAD")
        A(f"""
        {"s_setprio %d" % self.hprio if self.hprio else ""}
        v_mov_b32 v8, -1
        v_mov_b32 v9, -1
        v_mov_b32 v10, -1
        v_mov_b32 v11, -1
        v_mov_b32 v5, 0
        ds_write_b128 v3, v[8:11] offset:{LDS_Q}
        ds_write_b128 v5, v[8:11] offset:{LDS_FLAG}
        ds_write_b128 v5, v[8:11] offset:{LDS_WF}
        s_mul_i32 s52, s54, {CS}
        s_add_u32 s52, s52, {WS_CNT}
        v_lshrrev_b32 v6, 4, v1
        v_and_b32 v14, 3, v1
        v_lshlrev_b32 v4, 10, v14
        v_lshl_add_u32 v4, v6, 4, v4
        s_lshl_b32 s35, s53, 8
        v_add_u32 v4, s35, v4
        v_and_b32 v7, 8, v1
        v_lshl_add_u32 v7, v7, {3 if self.rk == 256 else 2}, v1
        v_lshl_add_u32 v7, v7, 2, s52
        s_cmp_lg_u32 s55, 0
        s_waitcnt lgkmcnt(0)
        s_cbranch_scc1 L_noclear
        s_mov_b64 exec, {0xff03 if self.ms else 3:#x}
        global_store_dword v7, v5, s[18:19] sc1
        s_mov_b64 exec, -1
        L_noclear:
        s_barrier
        """)
        if self.vtouch:
            A("""
            s_lshl_b32 s35, s54, 22
            s_lshl_b32 s36, s55, 14
            s_add_u32 s35, s35, s36
            v_mov_b32 v7, s35
            s_mov_b64 exec, 1
            global_load_dword v26, v7, s[8:9] nt
            s_mov_b64 exec, -1
            """)
        for t in range(4):
            A(f"global_load_dwordx4 v[{XR+4*t}:{XR+4*t+3}], v4, s[4:5] offset:{64*t}")
        self.jit(5)
        A("s_branch L_helper1\n@@END\n@@BEGIN_HFRONT")
        A(f"""
        L_helper1:
        s_getpc_b64 s[36:37]
        L_pc:
        s_sub_u32 s36, s36, L_pc-{NAME}
        s_subb_u32 s37, s37, 0
        v_lshl_add_u32 v4, v1, 5, s21
        v_lshlrev_b32 v4, 7, v4
        v_min_u32 v4, L_code_end-{NAME}-4, v4
        s_mov_b64 exec, {(1 << self.cpl) - 1}
        global_load_dword v25, v4, s[36:37]
        s_mov_b64 exec, -1
        s_lshl_b32 s35, s22, 5
        v_lshlrev_b32 v22, 5, v1
        s_cmp_lg_u32 s55, 0
        s_cbranch_scc1 L_nosig
        s_add_u32 s46, s16, s35
        s_addc_u32 s47, s17, 0
        s_mov_b32 s48, 1
        s_waitcnt vmcnt({6 if self.vtouch else 5})
        s_atomic_add s48, s[46:47], 0x0
        L_nosig:
        v_and_b32 v7, 15, v1
        v_lshrrev_b32 v13, 2, v7
        v_lshrrev_b32 v2, 3, v1
        v_and_b32 v4, 7, v1
        v_lshlrev_b32 v4, 4, v4
        v_lshl_add_u32 v2, v2, 10, v4
        s_mul_i32 s41, s22, {CS}
        s_add_u32 s41, s41, {WS_CNT}
        v_mul_u32_u24 v30, {8*CS}, v1
        v_add_u32 v30, s41, v30
        v_lshlrev_b32 v15, 16, v14
        v_lshl_add_u32 v15, v13, 6, v15
        v_lshl_add_u32 v15, v6, 4, v15
        s_lshl_b32 s35, s22, 13
        s_lshl_b32 s41, s21, 8
        s_add_u32 s35, s35, s41
        v_add_u32 v15, s35, v15
        v_lshlrev_b32 v23, 5, v14
        v_lshl_add_u32 v23, v13, 9, v23
        v_lshl_add_u32 v23, v6, 7, v23
        s_lshl_b32 s35, s54, 13
        v_add_u32 v23, s35, v23
        v_add_u32 v29, 0x1000, v23
        v_lshl_add_u32 v13, v6, 3, v13
        v_lshlrev_b32 v13, 7, v13
        v_lshl_add_u32 v13, v14, 3, v13
        s_lshl_b32 s35, s56, 10
        s_add_u32 s35, s35, {WS_P1}
        v_add_u32 v20, s35, v3
        s_lshl_b32 s35, s56, 7
        s_add_u32 s35, s35, {WS_ML}
        v_add_u32 v21, s35, v3
        s_and_b32 s38, s21, 3
        s_lshl_b32 s39, s22, 2
        s_add_u32 s38, s38, s39
        s_lshr_b32 s39, s21, 2
        s_lshl_b32 s35, s38, 3
        s_add_u32 s35, s35, s39
        s_lshl_b32 s35, s35, 10
        s_add_u32 s35, s35, {WS_P2}
        v_add_u32 v12, s35, v3
        s_mov_b32 s49, 0
        L_waitw:
        ds_read_b128 v[16:19], v5 offset:{LDS_WF}
        s_add_u32 s49, s49, 1
        s_waitcnt lgkmcnt(0)
        v_max3_u32 v16, v16, v17, v18
        v_max_u32 v16, v16, v19
        v_cmp_eq_u32 vcc, -1, v16
        s_cbranch_vccz L_havew
        {"s_sleep %d" % self.wsleep if self.wsleep else ""}
        s_cmp_lt_u32 s49, {SPIN_MAX * 16}
        s_cbranch_scc1 L_waitw
        L_havew:
        {"" if self.lateflag else "s_mov_b64 exec, 0xff"}
        {"" if self.lateflag else "global_load_dword v24, v22, s[16:17] sc1"}
        {"" if self.lateflag else "s_mov_b64 exec, -1"}
        s_waitcnt vmcnt({1 if self.lateflag else 2})
        """)
        self.stamp(1)
        def rd(k):
            t, nt = k // 4, k % 4
            r = WR + 4 * k
            A(f"ds_read_b64_tr_b16 v[{r}:{r+1}], v13 offset:{LDS_W + t*4096 + nt*32}")
            A(f"ds_read_b64_tr_b16 v[{r+2}:{r+3}], v13 offset:{LDS_W + t*4096 + nt*32 + 512}")
        for k in range(6): rd(k)
        for k in range(16):
            t, nt = k // 4, k % 4
            A(f"s_waitcnt lgkmcnt({2*min(5, 15-k)})")
            c = QA + 4 * nt
            A(f"v_mfma_f32_16x16x32_bf16 v[{c}:{c+3}], v[{WR+4*k}:{WR+4*k+3}], v[{XR+4*t}:{XR+4*t+3}], {'0' if t == 0 else f'v[{c}:{c+3}]'}")
            if k + 6 < 16: rd(k + 6)
        A("s_nop 5")
        for nt in range(1, 4):
            for r in range(4):
                A(f"v_mov_b32_dpp v{QA+r}, v{QA+4*nt+r} quad_perm:[0,1,2,3] row_mask:0xf bank_mask:{1<<nt:#x}")
        self.jit(1)
        A(f"global_store_dwordx4 v15, v[{QA}:{QA+3}], s[18:19]")
        if self.cleanq: A("v_mov_b32 v176, v15")
        self.stamp(2)
        A(f"""
        global_store_dwordx4 v12, v[8:11], s[18:19] sc1
        global_store_dwordx4 v20, v[8:11], s[18:19]
        s_mov_b64 exec, 0xff
        global_store_dwordx4 v21, v[8:11], s[18:19]
        s_getreg_b32 s59, hwreg(HW_REG_XCC_ID, 0, 3)
        s_lshl_b32 s59, s59, 2
        s_lshl_b32 s48, 1, s59
        s_add_u32 s46, s18, s52
        s_addc_u32 s47, s19, 0
        s_mov_b32 s49, 0
        s_branch {"L_pollflag1" if self.lateflag else "L_chkflag"}
        L_pollflag:
        s_sleep {self.fsleep}
        L_pollflag1:
        global_load_dword v24, v22, s[16:17] sc1
        L_chkflag:
        s_add_u32 s49, s49, 1
        s_waitcnt vmcnt(0)
        v_cmp_gt_u32 vcc, 4, v24
        s_cbranch_vccz L_gotflag
        s_cmp_lt_u32 s49, {SPIN_MAX}
        s_cbranch_scc1 L_pollflag
        L_gotflag:
        s_atomic_add s48, s[46:47], 0x0
        s_mov_b64 exec, -1
        s_lshl_b32 s35, s38, 17
        s_lshl_b32 s41, s39, 7
        s_add_u32 s35, s35, s41
        s_add_u32 s24, s12, s35
        s_addc_u32 s25, s13, 0
        s_sub_u32 s26, 0x400000, s35
        s_mov_b32 m0, {LDS_W}
        s_mov_b32 s33, 0
        """)
        for i in range(self.wofirst):
            A(f"""
            buffer_load_dwordx4 v2, s[24:27], s33 offen {wpol} lds
            s_add_u32 m0, m0, 0x400
            s_add_u32 s33, s33, 0x2000
            s_waitcnt vmcnt(0)
            """)
        A(f"""
        s_mov_b64 exec, 15
        s_mov_b32 s49, 0
        s_branch L_pollq1
        L_pollq:
        s_sleep {self.csleep}
        L_pollq1:
        global_load_dword v24, v30, s[18:19] sc1
        s_add_u32 s49, s49, 1
        s_waitcnt vmcnt(0)
        """)
        self.nibble_sum(25, 24, 26)
        A(f"""
        v_cmp_ne_u32 vcc, 8, v25
        s_cbranch_vccz L_gotq
        s_cmp_lt_u32 s49, {SPIN_MAX}
        s_cbranch_scc1 L_pollq
        L_gotq:
        s_lshl_b32 s48, 8, s59
        v_cmp_ne_u32 vcc, s48, v24
        s_mov_b32 s59, 1
        s_mov_b64 exec, -1
        {"s_cbranch_vccz L_near" if not self.forcefar else ""}
        s_mov_b32 s59, 0
        global_store_dwordx4 v15, v[{QA}:{QA+3}], s[18:19] sc1
        global_store_dwordx4 v20, v[8:11], s[18:19] sc1
        s_mov_b64 exec, 0xff
        global_store_dwordx4 v21, v[8:11], s[18:19] sc1
        s_mov_b64 exec, 15
        s_mov_b32 s48, 1
        s_waitcnt vmcnt(0)
        s_atomic_add s48, s[46:47], 0x4
        L_pollq2:
        s_sleep 32
        global_load_dword v24, v30, s[18:19] offset:4 sc1
        s_add_u32 s49, s49, 1
        s_waitcnt vmcnt(0)
        v_cmp_ne_u32 vcc, 8, v24
        s_cbranch_vccz L_gotq2
        s_cmp_lt_u32 s49, {SPIN_MAX}
        s_cbranch_scc1 L_pollq2
        L_gotq2:
        s_mov_b64 exec, -1
        L_near:
        """)
        for kq in range(4):
            for e in range(2):
                r = WR + 8 * kq + 4 * e
                A(f"global_load_dwordx4 v[{r}:{r+3}], v{23 if kq < 2 else 29}, s[18:19] offset:{(kq % 2) * 2048 + 16 * e} sc1")
        A("s_waitcnt vmcnt(4)")
        for j in range(8): A(f"v_add_f32 v{WR+j}, v{WR+j}, v{WR+8+j}")
        A("s_waitcnt vmcnt(0)")
        for j in range(8): A(f"v_add_f32 v{WR+16+j}, v{WR+16+j}, v{WR+24+j}")
        for j in range(8): A(f"v_add_f32 v{WR+j}, v{WR+j}, v{WR+16+j}")
        for j in range(4): A(f"v_cvt_pk_bf16_f32 v{24+j}, v{WR+2*j}, v{WR+2*j+1}")
        for j in range(4): A(f"v_min_u32 v{24+j}, -2, v{24+j}")
        A(f"ds_write_b128 v3, v[24:27] offset:{LDS_Q}")
        self.stamp(3)
        if self.stamps: A("s_mov_b32 s57, s49")
        A("s_branch L_helper2\n@@END\n@@BEGIN_HMID")
        if self.align is True: A(".p2align 12")
        A("L_helper2:")
        self.jit(4)
        self.stamp(4)
        A(f"""
        L_wo:
        s_waitcnt vmcnt({self.wopace})
        buffer_load_dwordx4 v2, s[24:27], s33 offen {wpol} lds
        s_add_u32 m0, m0, 0x400
        s_add_u32 s33, s33, 0x2000
        s_cmp_lt_u32 s33, 0x20000
        s_cbranch_scc1 L_wo
        ; wait for all first reports: every output partial slot is empty
        v_mul_u32_u24 v22, {CS}, v1
        v_add_u32 v22, {WS_CNT}, v22
        s_mov_b32 s49, 0
        s_mov_b32 exec_hi, 0
        L_pollall:
        global_load_dword v24, v22, s[18:19] sc1
        s_add_u32 s49, s49, 1
        s_waitcnt vmcnt(0)
        """)
        self.nibble_sum(25, 24, 26)
        A(f"""
        v_cmp_ne_u32 vcc, 8, v25
        s_cbranch_vccz L_gotall
        s_sleep 32
        s_cmp_lt_u32 s49, {SPIN_MAX}
        s_cbranch_scc1 L_pollall
        L_gotall:
        s_mov_b64 exec, -1
        v_mov_b32 v25, s59
        ds_write_b32 v5, v25 offset:{LDS_FLAG+4}
        s_cmp_eq_u32 s39, s22
        s_cselect_b32 s59, s59, 0
        s_and_b32 s41, s38, 3
        v_lshrrev_b32 v15, 2, v7
        v_lshlrev_b32 v15, 16, v15
        v_lshl_add_u32 v15, v14, 10, v15
        v_lshl_add_u32 v15, v6, 4, v15
        s_lshl_b32 s35, s22, 13
        s_lshl_b32 s50, s41, 8
        s_add_u32 s35, s35, s50
        s_add_u32 s35, s35, {WS_P1}
        v_add_u32 v15, s35, v15
        v_add_u32 v16, 0x1000, v15
        v_and_b32 v17, 7, v1
        v_lshlrev_b32 v17, 7, v17
        v_lshl_add_u32 v17, v6, 13, v17
        s_lshl_b32 s35, s22, 10
        s_lshl_b32 s50, s41, 3
        s_add_u32 s35, s35, s50
        s_add_u32 s35, s35, {WS_ML}
        v_add_u32 v17, s35, v17
        v_lshrrev_b32 v18, 1, v1
        v_lshlrev_b32 v18, 13, v18
        v_and_b32 v19, 1, v1
        v_lshl_add_u32 v18, v19, 4, v18
        s_lshl_b32 s35, s22, 10
        s_lshl_b32 s50, s21, 5
        s_add_u32 s35, s35, s50
        s_add_u32 s35, s35, {WS_P2}
        v_add_u32 v18, s35, v18
        v_and_b32 v19, 1, v6
        v_lshlrev_b32 v19, 6, v19
        v_lshrrev_b32 v20, 1, v6
        v_lshl_add_u32 v19, v20, 5, v19
        s_lshr_b32 s35, s21, 3
        s_lshl_b32 s35, s35, 10
        s_lshl_b32 s50, s22, 7
        s_add_u32 s35, s35, s50
        s_lshl_b32 s50, s55, 2
        s_add_u32 s35, s35, s50
        v_add_u32 v19, s35, v19
        """)
        BR, AR, CR = 32, 96, 128
        for t in range(4):
            for nt in range(4): rd(4 * t + nt)
            A("s_waitcnt lgkmcnt(0)")
        A("s_mov_b32 s49, 0\ns_waitcnt lgkmcnt(0)\ns_branch L_helper3\n@@END\n@@BEGIN_HTAIL")
        def poll1_loads():
            A("global_load_dwordx2 v[20:21], v17, s[18:19] sc1")
            for u in range(2):
                for t in range(4):
                    r = AR + 16 * u + 4 * t
                    A(f"global_load_dwordx4 v[{r}:{r+3}], v{15+u}, s[18:19] offset:{64*t} sc1")
        A("L_helper4:\ns_barrier")
        if self.nopoll:
            A("s_barrier")
            for i in range(5, 10): self.stamp(i)
            self.stamp_out(10)
            A("s_endpgm")
        poll1_loads()
        A("s_barrier")
        self.stamp(5)
        A("s_branch L_chk1\nL_poll1:")
        if self.t1: A(f"s_sleep {self.t1}")
        poll1_loads()
        A("L_chk1:\ns_add_u32 s49, s49, 1\ns_waitcnt vmcnt(8)\nv_max_u32 v22, v20, v21")
        for k in range(8):
            r = AR + 4 * k
            A(f"s_waitcnt vmcnt({7-k})")
            A(f"v_max3_u32 v22, v22, v{r}, v{r+1}")
            A(f"v_max3_u32 v22, v22, v{r+2}, v{r+3}")
        A(f"""
        v_cmp_eq_u32 vcc, -1, v22
        s_cmp_ge_u32 s49, {SPIN_MAX}
        s_cbranch_scc1 L_got1
        s_and_b64 exec, exec, vcc
        s_cbranch_scc1 L_poll1
        L_got1:
        s_mov_b64 exec, -1
        """)
        self.stamp(6)
        wl = [
            "v_max_f32_dpp v22, v20, v20 row_ror:1 row_mask:0xf bank_mask:0xf",
            "v_max_f32_dpp v22, v22, v22 row_ror:2 row_mask:0xf bank_mask:0xf",
            "v_max_f32_dpp v22, v22, v22 row_ror:4 row_mask:0xf bank_mask:0xf",
            "v_sub_f32 v22, v20, v22",
            "v_exp_f32 v22, v22",
            "v_mul_f32 v23, v22, v21",
            "v_add_f32_dpp v23, v23, v23 row_ror:1 row_mask:0xf bank_mask:0xf",
            "v_add_f32_dpp v23, v23, v23 row_ror:2 row_mask:0xf bank_mask:0xf",
            "v_add_f32_dpp v23, v23, v23 row_ror:4 row_mask:0xf bank_mask:0xf",
            "v_rcp_f32 v23, v23",
            "v_mul_f32 v22, v22, v23",
        ]
        def fm(u, r, nt):
            c = CR + 16 * u + 4 * nt + r
            op = "v_mul_f32_dpp" if (u == 0 and r == 0) else "v_fmac_f32_dpp"
            return f"{op} v{24+nt}, v22, v{c} row_newbcast:{4*u+r} row_mask:0xf bank_mask:0xf"
        f0 = [fm(0, r, nt) for r in range(4) for nt in range(4)]
        k = 0
        for u in range(2):
            for t in range(4):
                for nt in range(4):
                    a, b, c = AR + 16 * u + 4 * t, BR + 16 * t + 4 * nt, CR + 16 * u + 4 * nt
                    A(f"v_mfma_f32_16x16x32_bf16 v[{c}:{c+3}], v[{a}:{a+3}], v[{b}:{b+3}], {'0' if t == 0 else f'v[{c}:{c+3}]'}")
                    k += 1
                    if wl: A(wl.pop(0) + "\ns_nop 0")
                    elif k >= 24 and f0:
                        A(f0.pop(0)); A(f0.pop(0))
        assert not wl
        for x in f0: A(x)
        A("s_nop 4")
        for r in range(4):
            for nt in range(4): A(fm(1, r, nt))
        self.jit(3)
        A("s_cmp_eq_u32 s59, 1\ns_mov_b32 s49, 0")
        for nt in range(4): A(f"v_min_u32 v{24+nt}, -2, v{24+nt}")
        A(f"""
        s_cbranch_scc1 L_p2_near
        global_store_dwordx4 v12, v[24:27], s[18:19] sc1
        s_branch L_p2_done
        L_p2_near:
        global_store_dwordx4 v12, v[24:27], s[18:19]
        L_p2_done:
        {"s_barrier" if self.clean else ""}
        {f"global_store_dwordx4 v176, v[{QA}:{QA+3}], s[18:19] sc1" if self.cleanq else ""}
        """)
        self.stamp(7)
        REDO = f"""s_cmp_lg_u32 s49, {self.nre}
            s_cbranch_scc1 L_poll2a
            s_cmp_lg_u32 s59, 1
            s_cbranch_scc1 L_poll2a
            s_mov_b64 s[40:41], exec
            s_mov_b64 exec, -1
            global_store_dwordx4 v12, v[24:27], s[18:19] sc1
            s_mov_b64 exec, s[40:41]
            s_mov_b32 s59, 0"""
        REDO2 = """s_cmp_lg_u32 s59, 1
            s_cbranch_scc1 L_sum2
            global_store_dwordx4 v12, v[24:27], s[18:19] sc1
            L_sum2:"""
        if self.p2depth == 1:
            A(f"""
            s_branch L_poll2a
            L_poll2:
            {"s_sleep %d" % self.t2 if self.t2 else ""}
            {REDO if self.clean else ""}
            L_poll2a:
            global_load_dwordx4 v[28:31], v18, s[18:19] sc1
            s_add_u32 s49, s49, 1
            s_waitcnt vmcnt(0)
            v_max3_u32 v22, v28, v29, v30
            v_max_u32 v22, v22, v31
            v_cmp_eq_u32 vcc, -1, v22
            s_cmp_ge_u32 s49, {SPIN_MAX}
            s_cbranch_scc1 L_got2
            s_and_b64 exec, exec, vcc
            s_cbranch_scc1 L_poll2
            L_got2:
            s_mov_b64 exec, -1
            {REDO2 if self.clean else ""}
            """)
        else:
            A(f"""
            global_load_dwordx4 v[28:31], v18, s[18:19] sc1
            L_poll2:
            global_load_dwordx4 v[32:35], v18, s[18:19] sc1
            s_add_u32 s49, s49, 1
            s_waitcnt vmcnt(1)
            v_max3_u32 v22, v28, v29, v30
            v_max_u32 v22, v22, v31
            v_cmp_eq_u32 vcc, -1, v22
            s_cbranch_vccz L_got2
            global_load_dwordx4 v[28:31], v18, s[18:19] sc1
            s_waitcnt vmcnt(1)
            v_max3_u32 v22, v32, v33, v34
            v_max_u32 v22, v22, v35
            v_cmp_eq_u32 vcc, -1, v22
            s_cmp_lt_u32 s49, {SPIN_MAX}
            s_cbranch_vccz L_got2b
            s_cbranch_scc1 L_poll2
            L_got2b:
            v_mov_b32 v36, v32
            v_mov_b32 v37, v33
            v_mov_b32 v38, v34
            v_mov_b32 v39, v35
            s_branch L_sum2
            L_got2:
            v_mov_b32 v36, v28
            v_mov_b32 v37, v29
            v_mov_b32 v38, v30
            v_mov_b32 v39, v31
            L_sum2:
            s_nop 0
            """)
        self.stamp(8)
        z = 28 if self.p2depth == 1 else 36
        A(f"""
        v_permlane32_swap_b32 v{z}, v{z+1}
        v_permlane32_swap_b32 v{z+2}, v{z+3}
        s_nop 1
        v_add_f32 v{z}, v{z}, v{z+1}
        v_add_f32 v{z+2}, v{z+2}, v{z+3}
        s_nop 1
        v_permlane16_swap_b32 v{z}, v{z+2}
        s_nop 1
        v_add_f32 v{z}, v{z}, v{z+2}
        s_nop 1
        v_add_f32_dpp v{z}, v{z}, v{z} row_ror:2 row_mask:0xf bank_mask:0xf
        s_nop 1
        v_add_f32_dpp v{z}, v{z}, v{z} row_ror:4 row_mask:0xf bank_mask:0xf
        s_nop 1
        v_add_f32_dpp v{z}, v{z}, v{z} row_ror:8 row_mask:0xf bank_mask:0xf
        s_nop 1
        v_mov_b32_dpp v{z+1}, v{z} quad_perm:[1,1,1,1] row_mask:0xf bank_mask:0xf
        s_mov_b32 exec_lo, 0x00010001
        s_mov_b32 exec_hi, 0x00010001
        v_cvt_pk_bf16_f32 v{z}, v{z}, v{z+1}
        global_store_dword v19, v{z}, s[14:15] {"sc1" if self.clean else ""}
        """)
        self.stamp(9)
        self.stamp_out(10)
        A("L_end:\ns_endpgm\n@@END")

    def build(self):
        A = self.A
        self.L.append(HEADER.rstrip("\n"))
        self.L.append(f"; @launch grid=(256,1,1) block=(320,1,1) lds={LDS_SIZE}")
        A('.amdgcn_target "amdgcn-amd-amdhsa--gfx950"')
        A(".text")
        if self.align:
            self.L.append("; unreached padding: puts the entry at the start of a 4 KiB page (instruction prefetch stops at page ends)")
            A(".p2align 12\n.fill 832, 4, 0xbf810000")
        A(f".globl {NAME}\n.p2align 8\n.type {NAME},@function\n{NAME}:")
        A("""
        s_cmp_ge_u32 s2, 256
        s_cbranch_scc1 L_end
        s_load_dwordx16 s[4:19], s[0:1], 0
        """)
        self.stamp(0)
        self.jit(0)
        A("""
        v_lshrrev_b32 v2, 6, v0
        v_and_b32 v1, 63, v0
        s_lshr_b32 s21, s2, 3
        v_readfirstlane_b32 s20, v2
        s_and_b32 s22, s2, 7
        v_lshlrev_b32 v3, 4, v1
        s_mov_b32 s27, 0x20000
        s_mov_b32 s31, 0x20000
        s_and_b32 s54, s21, 24
        s_add_u32 s54, s54, s22
        s_and_b32 s55, s21, 7
        s_lshl_b32 s56, s54, 3
        s_add_u32 s56, s56, s55
        s_lshr_b32 s53, s21, 3
        s_lshl_b32 s34, s53, 20
        s_lshl_b32 s35, s22, 10
        s_add_u32 s34, s34, s35
        s_lshl_b32 s35, s55, 7
        s_add_u32 s34, s34, s35
        s_cmp_lg_u32 s20, 0
        s_cbranch_scc1 L_stream
        """)
        head = self.L
        self.L = []; self.streamer(); st = self.L
        self.L = []; self.helper(); hl = self.L
        parts, cur = {}, None
        for line in hl:
            t = line.strip()
            if t.startswith("@@BEGIN_"): cur = t[8:]; parts[cur] = []
            elif t == "@@END": cur = None
            else: parts[cur].append(line)
        self.L = head
        for line in st:
            t = line.strip()
            if t.startswith("@@"): self.L += parts.pop(t[2:])
            else: self.L.append(line)
        self.L += parts.pop("HTAIL")
        assert not parts
        A("L_code_end:")
        nv = max(self.nv_stream, 180)
        A(f""".section .rodata,"a"
.p2align 6
.amdhsa_kernel {NAME}
  .amdhsa_next_free_vgpr {nv}
  .amdhsa_next_free_sgpr 96
  .amdhsa_accum_offset {(nv + 3) // 4 * 4}
  .amdhsa_group_segment_fixed_size 0
  .amdhsa_kernarg_size 64
  .amdhsa_user_sgpr_count 2
  .amdhsa_user_sgpr_kernarg_segment_ptr 1
  .amdhsa_system_sgpr_workgroup_id_x 1
  .amdhsa_float_denorm_mode_32 3
.end_amdhsa_kernel""")
        return "\n".join(self.L) + "\n"


if __name__ == "__main__":
    out = sys.argv[1] if len(sys.argv) > 1 else "standalone__gqa_block_cached__decode.s"
    kw = eval("dict(" + (sys.argv[2] if len(sys.argv) > 2 else "") + ")")
    open(out, "w").write(Gen(**kw).build())
```

```python
import sys, math, struct

NAME = "standalone__gqa_block_cached__decode_kernel"
HEADER = """; Kernarg layout for this problem (64 bytes, ptrs only, base s[0:1]):
;   offset  24: d_in[3] wq  shape=(512, 4096) dtype=bfloat16
;   offset  32: d_in[4] wo  shape=(4096, 512) dtype=bfloat16
;   offset  48: d_debug   256 bytes (zero at entry: first counters)
;   offset  56: d_ws      workspace (hand-offs between workgroups)
;
; One persistent launch of 256 workgroups x 5 waves; wg = 8a + x.
; Hand-offs: counters are zeroed and slots are filled with an "empty" word (-1) inside the launch, counters say
; when that has happened, payload words are never -1. Each workgroup reports the die it runs on; stores stop at
; the die's L2 only where all readers were seen on that die, otherwise they are written through.
"""

WS_Q, WS_P1, WS_ML, WS_P2, WS_CNT, WS_STAMP = 0x0, 0x40000, 0x80000, 0x90000, 0xd0000, 0x200000
CS = 4352
LDS_W, LDS_Q, LDS_O, LDS_ML, LDS_FLAG, LDS_WF, LDS_SIZE = 0, 16384, 17408, 25600, 25728, 25744, 25760
SPIN_MAX = 40000


P2ADDR = f"""        s_and_b32 s38, s21, 3
        s_lshl_b32 s39, s22, 2
        s_add_u32 s38, s38, s39
        s_lshr_b32 s39, s21, 2
        s_lshl_b32 s35, s38, 3
        s_add_u32 s35, s35, s39
        s_lshl_b32 s35, s35, 10
        s_add_u32 s35, s35, {WS_P2}
        v_add_u32 v12, s35, v3
"""
P1ADDR = f"""        s_lshl_b32 s35, s56, 10
        s_add_u32 s35, s35, {WS_P1}
        v_add_u32 v20, s35, v3
        s_lshl_b32 s35, s56, 7
        s_add_u32 s35, s35, {WS_ML}
        v_add_u32 v21, s35, v3
"""
P1CLR = """global_store_dwordx4 v20, v[8:11], s[18:19]
s_mov_b64 exec, 0xff
global_store_dwordx4 v21, v[8:11], s[18:19]
s_mov_b64 exec, -1"""
P2CLR = "global_store_dwordx4 v12, v[8:11], s[18:19] sc1"


WOSETUP = f"""        ; wo block: rows s38*128.., columns s39*64..
        s_lshl_b32 s35, s38, 17
        s_lshl_b32 s41, s39, 7
        s_add_u32 s35, s35, s41
        s_add_u32 s24, s12, s35
        s_addc_u32 s25, s13, 0
        s_sub_u32 s26, 0x400000, s35
        s_mov_b32 m0, {LDS_W}
        s_mov_b32 s33, 0
"""


class Gen:
    def __init__(self, DP=5, EX=2, FR=3, W=5, WP=5, E=3, W2=7, pol="nt", wpol="nt", fsleep=16, csleep=24,
                 wofirst=2, wopace=1, ms=(), table=(0, 0, 0, 0, 1, 2, 4, 8), base=0, lagk=2, b0="first", neg=False, rk=256, w8=0, etab=None, t1=0, t2=0, nopoll=False, clean=False, cleanq=False, nre=3, vtouch=False, jitter=0, skewb=0, skewx=0, perm=None, skewtab=None, WC=None, xtab=None, cpl=3, hprio=3, sprio=0, wsleep=0, lateflag=False, wol=0, hoist=(), wos=0, fine=0, abl=(), p2early=0, seq=None, wopre=0, burst=0, incr=False, pads=False,
                 split=2, align=True, forcefar=False, p2depth=1, stamps=False, prog=False):
        self.__dict__.update(locals())
        self.L = []

    def A(self, s):
        for line in s.strip("\n").split("\n"):
            line = line.strip()
            if not line:
                continue
            self.L.append(line if line.endswith(":") or line.startswith(".") else "    " + line)

    def stamp(self, idx):
        if self.stamps:
            self.A(f"s_memrealtime s[{60+2*idx}:{61+2*idx}]")

    def jit(self, k):
        if self.jitter:
            self.jn = getattr(self, "jn", 0) + 1
            mul = [0x9E3779B1, 0x85EBCA77, 0xC2B2AE3D, 0x27D4EB2F, 0x165667B1, 0xD3A2646D, 0xFD7046C5, 0xB55A4F09][(k + self.jitter) % 8]
            self.A(f"""
            s_add_u32 s94, s2, {17 * self.jitter + k}
            s_mul_i32 s94, s94, {mul:#x}
            s_lshr_b32 s94, s94, 28
            s_cmp_lt_u32 s94, 12
            s_cbranch_scc1 L_j{self.jn}
            s_sub_u32 s94, s94, 11
            s_lshl_b32 s94, s94, 2
            L_jl{self.jn}:
            s_sleep 127
            s_sub_u32 s94, s94, 1
            s_cmp_lg_u32 s94, 0
            s_cbranch_scc1 L_jl{self.jn}
            L_j{self.jn}:
            """)

    def skew_code(self):
        c = ""
        if self.perm:
            km, ka = self.perm
            c += f"s_mul_i32 s93, s54, {km}\ns_and_b32 s93, s93, 15\ns_lshl_b32 s93, s93, 18\ns_add_u32 s93, s93, 0x20000\n"
            c += f"s_mul_i32 s35, s54, {ka}\ns_and_b32 s35, s35, 31\ns_lshl_b32 s35, s35, 17\ns_add_u32 s33, s33, s35\n"
        elif self.skewtab:
            tb = sum(v << (8 * i) for i, v in enumerate(self.skewtab))
            c += f"s_lshl_b32 s35, s53, 3\ns_lshr_b32 s35, {tb:#x}, s35\n"
            if self.xtab:
                tx = sum(v << (4 * i) for i, v in enumerate(self.xtab))
                c += f"s_lshl_b32 s36, s22, 2\ns_lshr_b32 s36, {tx:#x}, s36\ns_and_b32 s36, s36, 15\ns_lshl_b32 s36, s36, 1\ns_add_u32 s35, s35, s36\n"
            c += "s_and_b32 s35, s35, 31\ns_lshl_b32 s35, s35, 17\ns_add_u32 s33, s33, s35\n"
        elif self.skewb or self.skewx:
            c += f"s_mul_i32 s35, s53, {self.skewb}\n"
            if self.skewx: c += f"s_mul_i32 s36, s22, {self.skewx}\ns_add_u32 s35, s35, s36\n"
            c += "s_and_b32 s35, s35, 31\ns_lshl_b32 s35, s35, 17\ns_add_u32 s33, s33, s35\n"
        return c

    def bump(self):
        if self.perm: return "s_add_u32 s33, s33, s93\ns_and_b32 s33, s33, 0x3fffff"
        if self.skewb or self.skewx or self.skewtab: return "s_add_u32 s33, s33, 0x20000\ns_and_b32 s33, s33, 0x3fffff"
        return "s_add_u32 s33, s33, 0x20000"

    def pad(self):
        if self.pads:
            n = self.npad = getattr(self, "npad", 0) + 1
            self.A(f"L_pad{n}:\ns_cbranch_execz L_pad{n+1}")

    def progstamp(self):
        if self.prog:
            self.A("s_memrealtime s[80:81]\ns_mov_b32 m0, s82\ns_add_u32 s82, s82, 1\ns_waitcnt lgkmcnt(0)\nv_writelane_b32 v26, s80, m0")

    def stamp_out(self, n):
        if not self.stamps:
            return
        A = self.A
        A("s_waitcnt lgkmcnt(0)")
        A("s_mov_b64 exec, 1")
        A(f"s_mul_i32 s58, s56, 5\ns_add_u32 s58, s58, s20\ns_lshl_b32 s58, s58, 6\ns_add_u32 s58, s58, {WS_STAMP}")
        A("v_mov_b32 v1, s58")
        for i in range(n):
            A(f"v_mov_b32 v2, s{60+2*i}\nglobal_store_dword v1, v2, s[18:19] offset:{4*i}")
        A("v_mov_b32 v2, s57\nglobal_store_dword v1, v2, s[18:19] offset:56")
        A("s_getreg_b32 s58, hwreg(HW_REG_XCC_ID)\nv_mov_b32 v2, s58\nglobal_store_dword v1, v2, s[18:19] offset:60")

    def streamer(self):
        A, DP, EX, W, WP, E, W2, pol = self.A, self.DP, self.EX, self.W, self.WP, self.E, self.W2, self.pol
        vOK, vOV, vMA, vMB = 2, 3, 4, 5
        vQ, vO = 8, 12
        vM, vL, vMX, vT, vAL, vAO = 20, 21, 22, 23, 24, 25
        vD, vS, vP, RING = 28, 44, 48, 56
        self.nv_stream = RING + 32 * DP
        C0 = DP + EX
        assert 1 <= EX < DP and E >= 1

        def slot(ch): return ch if ch < DP else min(ch, C0) - DP
        def reg(ch, k): return RING + 32 * slot(ch) + 4 * k
        st = dict(n=-4, landed=-4)

        def emit_load(ch, k):
            r = reg(ch, k)
            if k < 4: A(f"buffer_load_dwordx4 v[{r}:{r+3}], v{vOK}, s[24:27], s33 offen offset:{k*1024} {pol}")
            else: A(f"buffer_load_dwordx4 v[{r}:{r+3}], v{vOV}, s[28:31], s33 offen offset:{(k-4)*1024} {pol}")
            if k == 7: self.progstamp()

        def issue(w):
            i = st["n"]
            if i - st["landed"] >= w:
                A(f"s_waitcnt vmcnt({w-1})"); st["landed"] = i - (w - 1)
            if i < 0:
                A(f"buffer_load_dwordx4 v7, s[36:39], s40 offen {self.wpol} lds")
                if i < -1: A("s_add_u32 m0, m0, 0x400\ns_add_u32 s40, s40, 0x10000")
            else:
                if i % 8 == 0 and i > 0: A(self.bump())
                emit_load(i // 8, i % 8)
            st["n"] += 1

        def need(i):
            if st["landed"] <= i:
                A(f"s_waitcnt vmcnt({st['n'] - 1 - i})"); st["landed"] = i + 1

        def qk(ch, c):
            A(f"v_mfma_f32_16x16x32_bf16 v[{vD+4*c}:{vD+4*c+3}], v[{reg(ch,c)}:{reg(ch,c)+3}], v[{vQ}:{vQ+3}], 0")

        def pv(ch, c):
            r = reg(ch, 4 + c)
            A(f"v_mfma_f32_16x16x16_bf16 v[{vO}:{vO+3}], v[{vP+2*c}:{vP+2*c+1}], v[{r}:{r+1}], v[{vO}:{vO+3}]")
            A(f"v_mfma_f32_16x16x16_bf16 v[{vO+4}:{vO+7}], v[{vP+2*c}:{vP+2*c+1}], v[{r+2}:{r+3}], v[{vO+4}:{vO+7}]")

        def scores():
            A("s_nop 5")
            for c in range(4):
                A(f"v_mov_b32_dpp v{vS+c}, v{vD+4*c} quad_perm:[0,0,0,0] row_mask:0xf bank_mask:0xf")
            for r in range(1, 4):
                for c in range(4):
                    A(f"v_add_f32_dpp v{vS+c}, v{vD+4*c+r}, v{vS+c} quad_perm:[{r},{r},{r},{r}] row_mask:0xf bank_mask:0xf")
            A(f"""
            v_max3_f32 v{vMX}, v{vS}, v{vS+1}, v{vS+2}
            v_max_f32 v{vMX}, v{vMX}, v{vS+3}
            v_mul_f32 v{vMX}, s42, v{vMX}
            """)

        def probs():
            for c in range(4): A(f"v_fma_f32 v{vS+c}, v{vS+c}, s42, -v{vM}")
            for c in range(4): A(f"v_exp_f32 v{vS+c}, v{vS+c}")
            for c in range(4): A(f"v_cvt_pk_bf16_f32 v{vP+2*c+1}, v{vS+c}, v{vS+c}")
            A(f"v_add_f32 v{vS}, v{vS}, v{vS+1}")
            A(f"v_add_f32 v{vS+2}, v{vS+2}, v{vS+3}")
            for c in range(4):
                A(f"v_and_b32 v{vP+2*c}, v{vP+2*c+1}, v{vMA}")
                A(f"v_and_b32 v{vP+2*c+1}, v{vP+2*c+1}, v{vMB}")
            A(f"v_add_f32 v{vL}, v{vL}, v{vS}")
            A(f"v_add_f32 v{vL}, v{vL}, v{vS+2}")

        def extract(cs, pad):
            for r in range(4):
                for c in cs:
                    if r == 0: A(f"v_mov_b32_dpp v{vS+c}, v{vD+4*c} quad_perm:[0,0,0,0] row_mask:0xf bank_mask:0xf")
                    else: A(f"v_add_f32_dpp v{vS+c}, v{vD+4*c+r}, v{vS+c} quad_perm:[{r},{r},{r},{r}] row_mask:0xf bank_mask:0xf")
                if pad and r < 3: A(f"s_nop {pad-1}")

        def prob1(c):
            A(f"""
            v_fma_f32 v{vS+c}, v{vS+c}, s42, -v{vM}
            v_exp_f32 v{vS+c}, v{vS+c}
            s_nop 0
            v_cvt_pk_bf16_f32 v{vP+2*c+1}, v{vS+c}, v{vS+c}
            v_and_b32 v{vP+2*c}, v{vP+2*c+1}, v{vMA}
            v_and_b32 v{vP+2*c+1}, v{vP+2*c+1}, v{vMB}
            v_add_f32 v{vL}, v{vL}, v{vS+c}
            """)

        def fine_step(k, tag):
            if k == 2:
                A("s_nop 3"); extract([0, 1], 1)
            if k == 3:
                A("s_nop 3"); extract([2], 2) if False else None
                A("s_nop 3"); extract([2, 3], 1)
                A(f"""
                v_max3_f32 v{vMX}, v{vS}, v{vS+1}, v{vS+2}
                v_max_f32 v{vMX}, v{vMX}, v{vS+3}
                v_mul_f32 v{vMX}, s42, v{vMX}
                v_cmp_gt_f32 vcc, v{vMX}, v{vM}
                s_cbranch_vccz L_keep{tag}
                s_call_b64 s[44:45], L_rescale
                L_keep{tag}:
                """)
                prob1(0)
            if k in (4, 5, 6): prob1(k - 3)

        def softmax(tag):
            scores()
            A(f"""
            v_cmp_gt_f32 vcc, v{vMX}, v{vM}
            s_cbranch_vccz L_keep{tag}
            s_call_b64 s[44:45], L_rescale
            L_keep{tag}:
            """)
            probs()

        def wavemax():
            A(f"""
            v_mov_b32 v{vT}, v{vMX}
            s_nop 1
            v_permlane16_swap_b32 v{vMX}, v{vT}
            s_nop 1
            v_max_f32 v{vMX}, v{vMX}, v{vT}
            v_mov_b32 v{vT}, v{vMX}
            s_nop 1
            v_permlane32_swap_b32 v{vMX}, v{vT}
            s_nop 1
            v_max3_f32 v{vMX}, v{vMX}, v{vT}, v{vM}
            """)

        def rescale():
            A(f"""
            v_sub_f32 v{vAL}, v{vM}, v{vMX}
            v_exp_f32 v{vAL}, v{vAL}
            v_mov_b32 v{vM}, v{vMX}
            v_mul_f32 v{vL}, v{vL}, v{vAL}
            s_nop 0
            """)
            for g in range(4):
                A(f"v_mov_b32_dpp v{vAO}, v{vAL} row_newbcast:{4*g} row_mask:{1<<g:#x} bank_mask:0xf")
                A("s_nop 1")
            for r in range(8): A(f"v_mul_f32 v{vO+r}, v{vO+r}, v{vAO}")

        A("@@HHEAD")
        A(f"""
        L_stream:
        {"s_setprio %d" % self.sprio if self.sprio else ""}
        v_and_b32 v6, 3, v1
        v_lshlrev_b32 v{vOK}, 4, v6
        v_bfe_u32 v7, v1, 2, 2
        v_lshl_add_u32 v{vOK}, v7, 8, v{vOK}
        v_lshrrev_b32 v7, 4, v1
        v_lshl_add_u32 v{vOK}, v7, 6, v{vOK}
        v_lshrrev_b32 v7, 3, v1
        v_lshlrev_b32 v7, 13, v7
        v_and_b32 v8, 7, v1
        v_lshl_add_u32 v7, v8, 4, v7
        s_sub_u32 s40, s20, 1
        s_lshl_b32 m0, s40, 12
        s_lshl_b32 s33, s55, 2
        s_add_u32 s33, s33, s40
        s_lshl_b32 s33, s33, 12
        {self.skew_code()}
        s_lshl_b32 s40, s40, 18
        s_sub_u32 s38, 0x400000, s34
        s_mov_b32 s39, 0x20000
        s_lshl_b32 s35, s54, 22
        s_mov_b32 s26, 0x400000
        s_mov_b32 s30, 0x400000
        {"s_mov_b32 s82, 0" if self.prog else ""}
        {"v_mov_b32 v26, 0" if self.prog else ""}
        s_waitcnt lgkmcnt(0)
        s_add_u32 s36, s10, s34
        s_addc_u32 s37, s11, 0
        s_add_u32 s24, s6, s35
        s_addc_u32 s25, s7, 0
        s_add_u32 s28, s8, s35
        s_addc_u32 s29, s9, 0
        """)
        told = False
        if self.b0 == "first": A("s_barrier")
        for i in range(-4, 8 * DP):
            issue(WP)
            if st["landed"] >= 0 and not told:
                A(f"s_mov_b64 exec, 1\nds_write_b32 v{vP}, v{vP} offset:{LDS_WF}\ns_mov_b64 exec, -1"); told = True
            if i == WP - 5:
                bits = struct.unpack("<I", struct.pack("<f", math.log2(math.e) / math.sqrt(128.0)))[0]
                A(f"""
                v_mov_b32 v7, 0xffff
                v_mov_b32 v{vT}, 0xffff0000
                v_cmp_eq_u32 vcc, 0, v6
                v_cmp_eq_u32 s[46:47], 1, v6
                v_cmp_eq_u32 s[48:49], 2, v6
                v_cmp_eq_u32 s[50:51], 3, v6
                v_cndmask_b32 v{vMA}, 0, v7, vcc
                v_cndmask_b32 v{vMA}, v{vMA}, v{vT}, s[46:47]
                v_cndmask_b32 v{vMB}, 0, v7, s[48:49]
                v_cndmask_b32 v{vMB}, v{vMB}, v{vT}, s[50:51]
                v_mov_b32 v{vM}, 0xff7fffff
                v_mov_b32 v{vL}, 0
                """)
                for r in range(8): A(f"v_mov_b32 v{vO+r}, 0")
                A(f"s_mov_b32 s42, {bits:#x}")
                if self.stamps: A("s_mov_b32 s57, 0")
                A(f"s_lshl_b32 s40, s20, 2\ns_sub_u32 s40, s40, 4\nv_mov_b32 v{vP}, s40")
                if self.b0 != "first": A("s_barrier")
        self.stamp(1)
        A("s_branch L_stream2")
        A("@@HFRONT")
        A("L_rescale:")
        wavemax()
        rescale()
        A("s_setpc_b64 s[44:45]")
        A(f"""
        L_stream2:
        s_mov_b32 s43, 0
        L_waitq:
        ds_read_b128 v[{vQ}:{vQ+3}], v{vOV} offset:{LDS_Q}
        s_add_u32 s43, s43, 1
        s_waitcnt lgkmcnt(0)
        v_max3_u32 v{vT}, v{vQ}, v{vQ+1}, v{vQ+2}
        v_max_u32 v{vT}, v{vT}, v{vQ+3}
        v_cmp_eq_u32 vcc, -1, v{vT}
        s_cbranch_vccz L_haveq
        s_sleep 1
        s_cmp_lt_u32 s43, {SPIN_MAX * 16}
        s_cbranch_scc1 L_waitq
        L_haveq:
        """)
        self.stamp(2)
        target = 8 * C0 + W
        todo = target - st["n"]
        points, done = 2 * C0, 0
        def free_limit(ch, half):
            lim = st["n"]
            while lim < target:
                prev = lim // 8 - DP
                if prev < ch or (prev == ch and lim % 8 < 4 * half): lim += 1
                else: break
            return lim
        for ch in range(C0):
            if ch == self.split:
                A("s_branch L_stream3\n@@HMID\nL_stream3:")
            for half in (1, 2):
                for c in range(4):
                    need(8 * ch + 4 * (half - 1) + c)
                    (qk if half == 1 else pv)(ch, c)
                done += 1
                want = 8 * DP + self.FR + -(-(todo - self.FR) * done // points)
                lim = free_limit(ch, half)
                while st["n"] < min(want, lim): issue(self.WC or W)
                if half == 1: softmax(f"p{ch}")
        assert st["n"] == target, (st, target)
        A(f"s_mov_b32 s43, {32 - C0}")
        if self.ms:
            spread = [0x00, 0x10, 0x11, 0x49, 0x55, 0x6d, 0x77, 0x7f, 0xff]
            enc = lambda n: spread[n] if n >= 0 else spread[-n] << 8
            if self.etab:
                assert not self.neg
                tb = sum((spread[n] | (e << 8)) << (16 * i) for i, (n, e) in enumerate(zip(self.table, self.etab)))
                enc = lambda n: spread[n] | (E << 8)
            else:
                tb = sum(enc(n) << (16 * i) for i, n in enumerate(self.table))
            mm = 0
            for m in self.ms: mm |= (1 << m) | (1 << (m - self.lagk)) | (1 << (m - self.lagk - 1))
            A(f"""
            s_mov_b32 s52, {enc(self.base)}
            s_mov_b32 s53, {mm:#x}
            s_mov_b32 s46, 0
            s_mov_b32 s41, {self.rk + 32}
            s_mul_i32 s35, s21, {CS}
            s_add_u32 s35, s35, {WS_CNT}
            s_add_u32 s48, s18, s35
            s_addc_u32 s49, s19, 0
            """)
            for i in range(4): A(f"s_mov_b32 s{84+i}, {(tb >> (32*i)) & 0xffffffff:#x}")

        def loop(label, w, until, ctl):
            A(f"{label}:")
            def iss(k):
                if k + w == 8: A(self.bump() + "\ns_sub_u32 s43, s43, 1")
                emit_load(C0, (k + w) % 8)
            for k in range(8):
                if ctl and k in self.hoist:
                    A(f"s_waitcnt vmcnt({w})")
                elif ctl:
                    A(f"s_bitcmp1_b32 s52, {k}\ns_cbranch_scc1 {label}_w{k}")
                    if self.neg and k in (0, 4):
                        A(f"s_bitcmp0_b32 s52, {k+8}\ns_cbranch_scc1 {label}_v{k}\ns_waitcnt vmcnt({w-2})\n{label}_v{k}:")
                    A(f"s_waitcnt vmcnt({w-1})\n{label}_w{k}:")
                    iss(k)
                    A(f"s_waitcnt vmcnt({w})")
                elif label == "L_loop" and ([0x00, 0x10, 0x11, 0x49, 0x55, 0x6d, 0x77, 0x7f, 0xff][self.w8] >> k) & 1:
                    iss(k)
                    A(f"s_waitcnt vmcnt({w})")
                else:
                    A(f"s_waitcnt vmcnt({w-1})")
                    if w < 8: iss(k)
                if k < 4: qk(C0, k)
                else: pv(C0, k - 4)
                if ctl and k + 1 in self.hoist: iss(k + 1)
                if w == 8: iss(k)
                if self.fine and (label == "L_loop" or self.fine > 1): fine_step(k, label)
                elif k == 3: softmax(label)
            if ctl:
                A(f"s_bitcmp1_b32 s53, s43\ns_cbranch_scc0 {label}_m\ns_call_b64 s[44:45], L_rank\n{label}_m:")
            if ctl and self.etab:
                A(f"s_lshr_b32 s50, s52, 8\ns_cmp_gt_u32 s43, s50\ns_cbranch_scc1 {label}")
            else:
                A(f"s_cmp_lg_u32 s43, {until}\ns_cbranch_scc1 {label}")
        loop("L_loop", W, E, bool(self.ms))
        A("s_branch L_page2")
        if self.ms:
            A(f"""
            ; At a milestone wave 1 counts itself in among its seven peers (same a); how many were there first decides
            ; how many loads the four waves keep in flight. Calls 1 and 2: wave 1 asks and reads the answer; call 3: all take it.
            L_rank:
            s_add_u32 s46, s46, 1
            v_mov_b32 v{vT}, 0
            s_cmp_eq_u32 s46, 3
            s_cbranch_scc1 L_rank_take
            s_cmp_lg_u32 s20, 1
            s_cbranch_scc1 L_rank_ret
            s_cmp_eq_u32 s46, 2
            s_cbranch_scc1 L_rank_use
            s_mov_b32 s47, 1
            s_atomic_add s47, s[48:49], s41 glc
            s_add_u32 s41, s41, 4
            L_rank_ret:
            s_setpc_b64 s[44:45]
            L_rank_use:
            s_waitcnt lgkmcnt(0)
            s_and_b32 s47, s47, 7
            s_lshr_b32 m0, s47, 1
            s_lshl_b32 s47, s47, 4
            s_movrels_b32 s36, s84
            s_lshr_b32 s52, s36, s47
            s_and_b32 s52, s52, 0xffff
            v_mov_b32 v{vMX}, s52
            ds_write_b32 v{vT}, v{vMX} offset:{LDS_FLAG+8}
            s_setpc_b64 s[44:45]
            L_rank_take:
            ds_read_b32 v{vT}, v{vT} offset:{LDS_FLAG+8}
            s_mov_b32 s46, 0
            s_waitcnt lgkmcnt(0)
            v_readfirstlane_b32 s47, v{vT}
            s_cmp_eq_u32 s47, -1
            s_cselect_b32 s52, s52, s47
            s_setpc_b64 s[44:45]
            """)
        if self.align is True: A(".p2align 12")
        A("L_helper3:\ns_branch L_helper4")
        A("L_page2:")
        for k in range(W, W2): emit_load(C0, k)
        a0, a1, a2, a3, a4, a5, a6, a7 = range(RING, RING + 8)
        A(f"""
        s_sub_u32 s34, s20, 1
        v_lshrrev_b32 v6, 4, v1
        v_and_b32 v7, 15, v1
        v_lshlrev_b32 v{a0}, 9, v6
        v_lshl_add_u32 v{a0}, v7, 5, v{a0}
        s_lshl_b32 s35, s34, 11
        v_add_u32 v{a0}, s35, v{a0}
        s_lshl_b32 s41, s34, 2
        v_lshl_add_u32 v{a1}, v1, 2, s41
        v_and_b32 v{a2}, 12, v1
        v_lshlrev_b32 v{a2}, 2, v{a2}
        s_lshl_b32 s35, s34, 9
        v_lshl_add_u32 v{a3}, v1, 3, s35
        s_lshl_b32 s35, s34, 4
        v_mov_b32 v{a4}, s35
        s_lshl_b32 s35, s56, 10
        s_lshl_b32 s36, s34, 8
        s_add_u32 s35, s35, s36
        s_add_u32 s35, s35, {WS_P1}
        v_lshl_add_u32 v{a5}, v1, 2, s35
        s_lshl_b32 s35, s56, 4
        s_add_u32 s35, s35, s34
        s_lshl_b32 s35, s35, 3
        s_add_u32 s35, s35, {WS_ML}
        v_mov_b32 v{a6}, s35
        v_mov_b32 v{a7}, 0
        """)
        nwo = self.wos // 4
        if nwo:
            A(f"""
            s_and_b32 s35, s21, 3
            s_lshl_b32 s36, s22, 2
            s_add_u32 s35, s35, s36
            s_lshl_b32 s35, s35, 17
            s_lshr_b32 s36, s21, 2
            s_lshl_b32 s36, s36, 7
            s_add_u32 s35, s35, s36
            s_add_u32 s36, s12, s35
            s_addc_u32 s37, s13, 0
            s_sub_u32 s38, 0x400000, s35
            s_mov_b32 s39, 0x20000
            s_mul_i32 s35, s34, {nwo}
            s_add_u32 s35, s35, {16 - self.wos}
            s_lshl_b32 s40, s35, 13
            s_lshl_b32 s51, s35, 10
            v_lshrrev_b32 v6, 3, v1
            v_and_b32 v7, 7, v1
            v_lshlrev_b32 v7, 4, v7
            v_lshl_add_u32 v27, v6, 10, v7
            """)
        NB = self.burst
        assert not (NB and (self.etab or nwo)) and E >= NB + 1
        if self.etab:
            A("s_cmp_eq_u32 s43, 1\ns_cbranch_scc1 L_last")
            loop("L_loop2", W2, 1, False)
            A("L_last:")
        elif E > NB + 1: loop("L_loop2", W2, NB + 1, False)
        CL = C0
        if NB:
            free = [c for c in range(1, DP) if slot(c) != slot(C0)][:NB]
            for k2 in range(W2, 8): emit_load(C0, k2)
            for c in free:
                A(self.bump())
                for k2 in range(8): emit_load(c, k2)
            seq_ch = [C0] + free
            for j, c in enumerate(seq_ch[:-1]):
                left = 8 * (NB - j)
                for k in range(8):
                    A(f"s_waitcnt vmcnt({7 - k + left})")
                    if k < 4: qk(c, k)
                    else: pv(c, k - 4)
                    if k == 3: softmax(f"b{j}")
            CL = seq_ch[-1]
        self.jit(2)
        for k in range(4):
            if k == 0 and not NB:
                A(f"s_waitcnt vmcnt({W2-1})")
                for k2 in range(W2, 8): emit_load(C0, k2)
                if nwo: A("s_mov_b32 m0, s51")
                for i in range(nwo):
                    A(f"s_nop 0\nbuffer_load_dwordx4 v27, s[36:39], s40 offen {self.wpol} lds")
                    if i < nwo - 1: A("s_add_u32 m0, m0, 0x400\ns_add_u32 s40, s40, 0x2000")
            else: A(f"s_waitcnt vmcnt({7-k+nwo})")
            qk(CL, k)
        scores()
        wavemax()
        A(f"""
        s_mov_b64 exec, 0x1111
        ds_write_b32 v{a1}, v{vMX} offset:{LDS_ML}
        s_mov_b64 exec, -1
        s_waitcnt lgkmcnt(0)
        s_barrier
        ds_read_b128 v[28:31], v{a2} offset:{LDS_ML}
        ds_read_b32 v{a7}, v{a7} offset:{LDS_FLAG+4}
        s_waitcnt lgkmcnt(1)
        v_max3_f32 v{vMX}, v28, v29, v30
        v_max_f32 v{vMX}, v{vMX}, v31
        """)
        rescale()
        probs()
        A(f"""
        v_mov_b32 v{vT}, v{vL}
        v_readlane_b32 s50, v{vM}, s41
        s_waitcnt lgkmcnt(0)
        v_permlane16_swap_b32 v{vL}, v{vT}
        v_cmp_eq_u32 vcc, 1, v{a7}
        s_min_u32 s50, s50, -2
        v_add_f32 v{vL}, v{vL}, v{vT}
        v_mov_b32 v{vT}, v{vL}
        v_mov_b32 v44, s50
        s_nop 0
        v_permlane32_swap_b32 v{vL}, v{vT}
        s_nop 0
        v_add_f32 v{vL}, v{vL}, v{vT}
        s_mov_b64 exec, 0x1111
        ds_write_b32 v{a1}, v{vL} offset:{LDS_ML+64}
        s_mov_b64 exec, -1
        """)
        for c in range(4):
            A(f"s_waitcnt vmcnt({3-c+nwo})")
            pv(CL, c)
        self.stamp(3)
        A(f"""
        s_nop 6
        ds_write_b128 v{a0}, v[{vO}:{vO+3}] offset:{LDS_O}
        ds_write_b128 v{a0}, v[{vO+4}:{vO+7}] offset:{LDS_O+16}
        s_waitcnt lgkmcnt(0)
        s_barrier
        ds_read_b64 v[36:37], v{a3} offset:{LDS_O}
        ds_read_b64 v[38:39], v{a3} offset:{LDS_O+2048}
        ds_read_b64 v[40:41], v{a3} offset:{LDS_O+4096}
        ds_read_b64 v[42:43], v{a3} offset:{LDS_O+6144}
        ds_read_b128 v[32:35], v{a4} offset:{LDS_ML+64}
        s_waitcnt lgkmcnt(3)
        v_add_f32 v36, v36, v38
        v_add_f32 v37, v37, v39
        s_waitcnt lgkmcnt(1)
        v_add_f32 v40, v40, v42
        v_add_f32 v41, v41, v43
        v_add_f32 v36, v36, v40
        v_add_f32 v37, v37, v41
        v_cvt_pk_bf16_f32 v48, v36, v37
        s_waitcnt lgkmcnt(0)
        v_min_u32 v48, -2, v48
        v_add_f32 v32, v32, v33
        v_add_f32 v34, v34, v35
        v_mov_b32_dpp v49, v48 quad_perm:[1,1,1,1] row_mask:0xf bank_mask:0xf
        v_mov_b32_dpp v50, v48 quad_perm:[2,2,2,2] row_mask:0xf bank_mask:0xf
        v_mov_b32_dpp v51, v48 quad_perm:[3,3,3,3] row_mask:0xf bank_mask:0xf
        v_add_f32 v45, v32, v34
        s_mov_b32 exec_lo, 0x11111111
        s_mov_b32 exec_hi, 0x11111111
        v_min_u32 v45, -2, v45
        s_cbranch_vccz L_pub_far
        global_store_dwordx4 v{a5}, v[48:51], s[18:19]
        s_mov_b64 exec, 1
        global_store_dwordx2 v{a6}, v[44:45], s[18:19]
        {"s_memrealtime s[68:69]" if self.stamps else ""}
        {"" if self.clean else ("s_branch L_pub_done" if self.stamps or self.wos else "s_endpgm")}
        {"s_barrier" if self.clean else ""}
        {"s_mov_b32 exec_lo, 0x11111111" if self.clean else ""}
        {"s_mov_b32 exec_hi, 0x11111111" if self.clean else ""}
        L_pub_far:
        global_store_dwordx4 v{a5}, v[48:51], s[18:19] sc1
        s_mov_b64 exec, 1
        global_store_dwordx2 v{a6}, v[44:45], s[18:19] sc1
        {"s_cbranch_vccnz L_pub_done" if self.stamps else ""}
        {"s_memrealtime s[68:69]" if self.stamps else ""}
        L_pub_done:
        {"s_waitcnt vmcnt(2)" if self.wos else ""}
        {"s_barrier" if self.wos else ""}
        """)
        if self.prog:
            A(f"s_mov_b64 exec, -1\ns_lshl_b32 s58, s2, 2\ns_add_u32 s58, s58, s20\ns_sub_u32 s58, s58, 1\ns_lshl_b32 s58, s58, 8\ns_add_u32 s58, s58, {WS_STAMP + 0x100000}")
            A("v_lshl_add_u32 v2, v1, 2, s58\nglobal_store_dword v2, v26, s[18:19]")
        self.stamp_out(5)
        A("s_endpgm")

    def nibble_sum(self, d, s, t):
        self.A(f"""
        v_and_b32 v{d}, 0x0f0f0f0f, v{s}
        v_lshrrev_b32 v{t}, 4, v{s}
        v_and_b32 v{t}, 0x0f0f0f0f, v{t}
        v_add_u32 v{d}, v{d}, v{t}
        v_sad_u8 v{d}, v{d}, 0, 0
        """)

    def helper(self):
        A, wpol = self.A, self.wpol
        WR, XR, QA = 32, 96, 160
        seq = self.seq or {0: "zbx", 1: "zpbx", 2: "zbpx"}[self.p2early]
        self.seq = seq
        self.p2early = "p" in seq
        A("@@BEGIN_HHEAD")
        A(f"""
        {"s_setprio %d" % self.hprio if self.hprio else ""}
        v_mov_b32 v8, -1
        v_mov_b32 v9, -1
        v_mov_b32 v10, -1
        v_mov_b32 v11, -1
        v_mov_b32 v5, 0
        ds_write_b128 v3, v[8:11] offset:{LDS_Q}
        ds_write_b128 v5, v[8:11] offset:{LDS_FLAG}
        ds_write_b128 v5, v[8:11] offset:{LDS_WF}
        s_mul_i32 s52, s54, {CS}
        s_add_u32 s52, s52, {WS_CNT}
        v_lshrrev_b32 v6, 4, v1
        v_and_b32 v14, 3, v1
        v_lshlrev_b32 v4, 10, v14
        v_lshl_add_u32 v4, v6, 4, v4
        s_lshl_b32 s35, s53, 8
        v_add_u32 v4, s35, v4
        v_and_b32 v7, 8, v1
        v_lshl_add_u32 v7, v7, {3 if self.rk == 256 else 2}, v1
        v_lshl_add_u32 v7, v7, 2, s52
        {P2ADDR if self.p2early else ""}
        {P1ADDR if "q" in seq else ""}
        s_waitcnt lgkmcnt(0)
        """)
        after = None
        for tok in seq:
            n = 0
            if tok == "z":
                A(f"""
                s_cmp_lg_u32 s55, 0
                s_cbranch_scc1 L_noclear
                ; one workgroup per group zeroes the group's counters
                s_mov_b64 exec, {0xff03 if self.ms else 3:#x}
                global_store_dword v7, v5, s[18:19] sc1
                s_mov_b64 exec, -1
                L_noclear:
                """)
                after = 0; continue
            if tok == "b": A("s_barrier")
            if tok == "p": A("; empty this workgroup's output partial slot\n" + P2CLR); n = 1
            if tok == "q": A(P1CLR); n = 2
            if tok == "x":
                for t in range(4):
                    A(f"global_load_dwordx4 v[{XR+4*t}:{XR+4*t+3}], v4, s[4:5] offset:{64*t}")
                n = 4
            if after is not None: after += n
        self.zwait = after + 1
        self.xwait = 1 + sum({"p": 1, "q": 2, "z": 0}.get(t, 0) for t in seq[seq.index("x"):])
        self.jit(5)
        A("s_branch L_helper1\n@@END\n@@BEGIN_HFRONT")
        A(f"""
        L_helper1:
        ; pull a share of the kernel's code into this die's L2
        s_getpc_b64 s[36:37]
        L_pc:
        s_sub_u32 s36, s36, L_pc-{NAME}
        s_subb_u32 s37, s37, 0
        v_lshl_add_u32 v4, v1, 5, s21
        v_lshlrev_b32 v4, 7, v4
        v_min_u32 v4, L_code_end-{NAME}-4, v4
        s_mov_b64 exec, {(1 << self.cpl) - 1}
        global_load_dword v25, v4, s[36:37]
        s_mov_b64 exec, -1
        s_lshl_b32 s35, s22, 5
        v_lshlrev_b32 v22, 5, v1
        s_cmp_lg_u32 s55, 0
        s_cbranch_scc1 L_nosig
        s_add_u32 s46, s16, s35
        s_addc_u32 s47, s17, 0
        s_mov_b32 s48, 1
        s_waitcnt vmcnt({self.zwait})
        s_atomic_add s48, s[46:47], 0x0
        L_nosig:
        v_and_b32 v7, 15, v1
        v_lshrrev_b32 v13, 2, v7
        ; wo rows: (lane>>3)*1024 + (lane&7)*16
        v_lshrrev_b32 v2, 3, v1
        v_and_b32 v4, 7, v1
        v_lshlrev_b32 v4, 4, v4
        v_lshl_add_u32 v2, v2, 10, v4
        s_mul_i32 s41, s22, {CS}
        s_add_u32 s41, s41, {WS_CNT}
        v_mul_u32_u24 v30, {8*CS}, v1
        v_add_u32 v30, s41, v30
        v_lshlrev_b32 v15, 16, v14
        v_lshl_add_u32 v15, v13, 6, v15
        v_lshl_add_u32 v15, v6, 4, v15
        s_lshl_b32 s35, s22, 13
        s_lshl_b32 s41, s21, 8
        s_add_u32 s35, s35, s41
        v_add_u32 v15, s35, v15
        v_lshlrev_b32 v23, 5, v14
        v_lshl_add_u32 v23, v13, 9, v23
        v_lshl_add_u32 v23, v6, 7, v23
        s_lshl_b32 s35, s54, 13
        v_add_u32 v23, s35, v23
        v_add_u32 v29, 0x1000, v23
        v_lshl_add_u32 v13, v6, 3, v13
        v_lshlrev_b32 v13, 7, v13
        v_lshl_add_u32 v13, v14, 3, v13
        {"" if self.seq and "q" in self.seq else P1ADDR}
        {"" if self.p2early else P2ADDR}
        s_mov_b32 s49, 0
        L_waitw:
        ds_read_b128 v[16:19], v5 offset:{LDS_WF}
        s_add_u32 s49, s49, 1
        s_waitcnt lgkmcnt(0)
        v_max3_u32 v16, v16, v17, v18
        v_max_u32 v16, v16, v19
        v_cmp_eq_u32 vcc, -1, v16
        s_cbranch_vccz L_havew
        {"s_sleep %d" % self.wsleep if self.wsleep else ""}
        s_cmp_lt_u32 s49, {SPIN_MAX * 16}
        s_cbranch_scc1 L_waitw
        L_havew:
        {"" if self.lateflag else "s_mov_b64 exec, 0xff"}
        {"" if self.lateflag else "global_load_dword v24, v22, s[16:17] sc1"}
        {"" if self.lateflag else "s_mov_b64 exec, -1"}
        s_waitcnt vmcnt({self.xwait + (0 if self.lateflag else 1)})
        """)
        self.stamp(1)
        def rd(k):
            t, nt = k // 4, k % 4
            r = WR + 4 * k
            A(f"ds_read_b64_tr_b16 v[{r}:{r+1}], v13 offset:{LDS_W + t*4096 + nt*32}")
            A(f"ds_read_b64_tr_b16 v[{r+2}:{r+3}], v13 offset:{LDS_W + t*4096 + nt*32 + 512}")
        for k in range(6): rd(k)
        for k in range(16):
            t, nt = k // 4, k % 4
            A(f"s_waitcnt lgkmcnt({2*min(5, 15-k)})")
            c = QA + 4 * nt
            A(f"v_mfma_f32_16x16x32_bf16 v[{c}:{c+3}], v[{WR+4*k}:{WR+4*k+3}], v[{XR+4*t}:{XR+4*t+3}], {'0' if t == 0 else f'v[{c}:{c+3}]'}")
            if k + 6 < 16: rd(k + 6)
        A("s_nop 5")
        for nt in range(1, 4):
            for r in range(4):
                A(f"v_mov_b32_dpp v{QA+r}, v{QA+4*nt+r} quad_perm:[0,1,2,3] row_mask:0xf bank_mask:{1<<nt:#x}")
        self.jit(1)
        A(f"global_store_dwordx4 v15, v[{QA}:{QA+3}], s[18:19]")
        if self.cleanq: A("v_mov_b32 v176, v15")
        self.stamp(2)
        A(f"""
        {"" if self.p2early else P2CLR}
        {"" if "q" in seq else P1CLR}
        {WOSETUP if self.wopre else ""}
        """)
        for i in range(self.wopre):
            A(f"""
            s_waitcnt vmcnt(0)
            buffer_load_dwordx4 v2, s[24:27], s33 offen {wpol} lds
            s_add_u32 m0, m0, 0x400
            s_add_u32 s33, s33, 0x2000
            """)
        A(f"""
        {"s_waitcnt vmcnt(0)" if self.wopre else ""}
        s_mov_b64 exec, 0xff
        ; report the stores done, and the die this workgroup runs on
        s_getreg_b32 s59, hwreg(HW_REG_XCC_ID, 0, 3)
        s_lshl_b32 s59, s59, 2
        s_lshl_b32 s48, 1, s59
        s_add_u32 s46, s18, s52
        s_addc_u32 s47, s19, 0
        s_mov_b32 s49, 0
        s_branch {"L_pollflag1" if self.lateflag else "L_chkflag"}
        L_pollflag:
        s_sleep {self.fsleep}
        L_pollflag1:
        global_load_dword v24, v22, s[16:17] sc1
        L_chkflag:
        s_add_u32 s49, s49, 1
        s_waitcnt vmcnt(0)
        v_cmp_gt_u32 vcc, 4, v24
        s_cbranch_vccz L_gotflag
        s_cmp_lt_u32 s49, {SPIN_MAX}
        s_cbranch_scc1 L_pollflag
        L_gotflag:
        s_atomic_add s48, s[46:47], 0x0
        s_mov_b64 exec, -1
        {"" if self.wopre else WOSETUP}
        """)
        for i in range(self.wofirst):
            A(f"""
            buffer_load_dwordx4 v2, s[24:27], s33 offen {wpol} lds
            s_add_u32 m0, m0, 0x400
            s_add_u32 s33, s33, 0x2000
            s_waitcnt vmcnt(0)
            """)
        A(f"""
        s_mov_b64 exec, 15
        s_mov_b32 s49, 0
        s_branch L_pollq1
        L_pollq:
        s_sleep {self.csleep}
        L_pollq1:
        global_load_dword v24, v30, s[18:19] sc1
        s_add_u32 s49, s49, 1
        s_waitcnt vmcnt(0)
        """)
        self.nibble_sum(25, 24, 26)
        A(f"""
        v_cmp_ne_u32 vcc, 8, v25
        s_cbranch_vccz L_gotq
        s_cmp_lt_u32 s49, {SPIN_MAX}
        s_cbranch_scc1 L_pollq
        L_gotq:
        ; near = all 32 workgroups of this kv head run on this die: its L2 already holds what they stored
        s_waitcnt lgkmcnt(0)
        s_lshl_b32 s48, 8, s59
        v_cmp_ne_u32 vcc, s48, v24
        s_mov_b32 s59, 1
        s_mov_b64 exec, -1
        {"s_cbranch_vccz L_near" if not self.forcefar else ""}
        s_mov_b32 s59, 0
        global_store_dwordx4 v15, v[{QA}:{QA+3}], s[18:19] sc1
        global_store_dwordx4 v20, v[8:11], s[18:19] sc1
        s_mov_b64 exec, 0xff
        global_store_dwordx4 v21, v[8:11], s[18:19] sc1
        s_mov_b64 exec, 15
        s_mov_b32 s48, 1
        s_waitcnt vmcnt(0)
        s_atomic_add s48, s[46:47], 0x4
        L_pollq2:
        s_sleep 32
        global_load_dword v24, v30, s[18:19] offset:4 sc1
        s_add_u32 s49, s49, 1
        s_waitcnt vmcnt(0)
        v_cmp_ne_u32 vcc, 8, v24
        s_cbranch_vccz L_gotq2
        s_cmp_lt_u32 s49, {SPIN_MAX}
        s_cbranch_scc1 L_pollq2
        L_gotq2:
        s_mov_b64 exec, -1
        L_near:
        """)
        for kq in range(4):
            for e in range(2):
                r = WR + 8 * kq + 4 * e
                A(f"global_load_dwordx4 v[{r}:{r+3}], v{23 if kq < 2 else 29}, s[18:19] offset:{(kq % 2) * 2048 + 16 * e} sc1")
        A("s_waitcnt vmcnt(4)")
        for j in range(8): A(f"v_add_f32 v{WR+j}, v{WR+j}, v{WR+8+j}")
        A("s_waitcnt vmcnt(0)")
        for j in range(8): A(f"v_add_f32 v{WR+16+j}, v{WR+16+j}, v{WR+24+j}")
        for j in range(8): A(f"v_add_f32 v{WR+j}, v{WR+j}, v{WR+16+j}")
        for j in range(4): A(f"v_cvt_pk_bf16_f32 v{24+j}, v{WR+2*j}, v{WR+2*j+1}")
        for j in range(4): A(f"v_min_u32 v{24+j}, -2, v{24+j}")
        A(f"ds_write_b128 v3, v[24:27] offset:{LDS_Q}")
        self.stamp(3)
        if self.stamps: A("s_mov_b32 s57, s49")
        A("s_branch L_helper2\n@@END\n@@BEGIN_HMID")
        if self.align is True: A(".p2align 12")
        A("L_helper2:")
        self.jit(4)
        self.stamp(4)
        A(f"""
        L_wo:
        s_waitcnt vmcnt({self.wopace})
        buffer_load_dwordx4 v2, s[24:27], s33 offen {wpol} lds
        s_add_u32 m0, m0, 0x400
        s_add_u32 s33, s33, 0x2000
        s_cmp_lt_u32 s33, {(16 - self.wol - self.wos) * 0x2000}
        s_cbranch_scc1 L_wo
        ; wait for all first reports: every output partial slot is empty
        v_mul_u32_u24 v22, {CS}, v1
        v_add_u32 v22, {WS_CNT}, v22
        s_mov_b32 s49, 0
        s_mov_b32 exec_hi, 0
        L_pollall:
        global_load_dword v24, v22, s[18:19] sc1
        s_add_u32 s49, s49, 1
        s_waitcnt vmcnt(0)
        """)
        self.nibble_sum(25, 24, 26)
        A(f"""
        v_cmp_ne_u32 vcc, 8, v25
        s_cbranch_vccz L_gotall
        s_sleep 32
        s_cmp_lt_u32 s49, {SPIN_MAX}
        s_cbranch_scc1 L_pollall
        L_gotall:
        s_mov_b64 exec, -1
        v_mov_b32 v25, s59
        ds_write_b32 v5, v25 offset:{LDS_FLAG+4}
        s_cmp_eq_u32 s39, s22
        s_cselect_b32 s59, s59, 0
        s_and_b32 s41, s38, 3
        v_lshrrev_b32 v15, 2, v7
        v_lshlrev_b32 v15, 16, v15
        v_lshl_add_u32 v15, v14, 10, v15
        v_lshl_add_u32 v15, v6, 4, v15
        s_lshl_b32 s35, s22, 13
        s_lshl_b32 s50, s41, 8
        s_add_u32 s35, s35, s50
        s_add_u32 s35, s35, {WS_P1}
        v_add_u32 v15, s35, v15
        v_add_u32 v16, 0x1000, v15
        v_and_b32 v17, 7, v1
        v_lshlrev_b32 v17, 7, v17
        v_lshl_add_u32 v17, v6, 13, v17
        s_lshl_b32 s35, s22, 10
        s_lshl_b32 s50, s41, 3
        s_add_u32 s35, s35, s50
        s_add_u32 s35, s35, {WS_ML}
        v_add_u32 v17, s35, v17
        v_lshrrev_b32 v18, 1, v1
        v_lshlrev_b32 v18, 13, v18
        v_and_b32 v19, 1, v1
        v_lshl_add_u32 v18, v19, 4, v18
        s_lshl_b32 s35, s22, 10
        s_lshl_b32 s50, s21, 5
        s_add_u32 s35, s35, s50
        s_add_u32 s35, s35, {WS_P2}
        v_add_u32 v18, s35, v18
        ; output dword: (a>>3)*1024 + x*128 + nt(row)*32 + (a&7)*4 ; nt(row) = 0,2,1,3
        v_and_b32 v19, 1, v6
        v_lshlrev_b32 v19, 6, v19
        v_lshrrev_b32 v20, 1, v6
        v_lshl_add_u32 v19, v20, 5, v19
        s_lshr_b32 s35, s21, 3
        s_lshl_b32 s35, s35, 10
        s_lshl_b32 s50, s22, 7
        s_add_u32 s35, s35, s50
        s_lshl_b32 s50, s55, 2
        s_add_u32 s35, s35, s50
        v_add_u32 v19, s35, v19
        """)
        BR, AR, CR = 32, 96, 128
        for t in range(4 - (self.wol + self.wos) // 4):
            for nt in range(4): rd(4 * t + nt)
            A("s_waitcnt lgkmcnt(0)")
        A("s_mov_b32 s49, 0\ns_waitcnt lgkmcnt(0)\ns_branch L_helper3\n@@END\n@@BEGIN_HTAIL")
        def poll1_loads():
            A("global_load_dwordx2 v[20:21], v17, s[18:19] sc1")
            for u in range(2):
                for t in range(4):
                    r = AR + 16 * u + 4 * t
                    A(f"global_load_dwordx4 v[{r}:{r+3}], v{15+u}, s[18:19] offset:{64*t} sc1")
        A("L_helper4:")
        if self.pads: A("s_mov_b64 exec, 0\ns_branch L_pad1\nL_padret:\ns_mov_b64 exec, -1")
        A("s_barrier")
        if self.nopoll:
            A("s_barrier")
            for i in range(5, 10): self.stamp(i)
            self.stamp_out(10)
            A("s_endpgm")
        poll1_loads()
        if self.wol:
            for i in range(self.wol):
                A(f"buffer_load_dwordx4 v2, s[24:27], s33 offen {wpol} lds\ns_add_u32 m0, m0, 0x400\ns_add_u32 s33, s33, 0x2000")
        A("s_barrier")
        self.stamp(5)
        if self.wol:
            A("s_waitcnt vmcnt(0)")
            ks = list(range(16 - self.wol, 16))
            for j, k in enumerate(ks):
                if j == 6: A("s_waitcnt lgkmcnt(6)")
                if j == 9: A("s_waitcnt lgkmcnt(6)")
                rd(k)
        if self.wos:
            A("s_barrier\ns_waitcnt vmcnt(0)\nv_max_u32 v22, v20, v21")
            for k in range(8):
                r = AR + 4 * k
                A(f"v_max3_u32 v22, v22, v{r}, v{r+1}\nv_max3_u32 v22, v22, v{r+2}, v{r+3}")
            A("v_cmp_eq_u32 vcc, -1, v22\ns_and_b64 exec, exec, vcc\ns_mov_b64 s[50:51], exec\ns_cbranch_scc0 L_nopoll")
            poll1_loads()
            A("L_nopoll:\ns_mov_b64 exec, -1")
            for j, k in enumerate(range(16 - self.wos, 16)):
                if j in (6, 9): A("s_waitcnt lgkmcnt(6)")
                rd(k)
            A("s_and_b64 exec, exec, s[50:51]\ns_cbranch_scc0 L_got1")
        if self.incr: self.tail_incr(AR, BR, CR, poll1_loads)
        else:
            A("s_branch L_chk1\nL_poll1:")
            if self.t1: A(f"s_sleep {self.t1}")
            poll1_loads()
            A("L_chk1:\ns_add_u32 s49, s49, 1\ns_waitcnt vmcnt(8)\nv_max_u32 v22, v20, v21")
            for k in range(8):
                r = AR + 4 * k
                A(f"s_waitcnt vmcnt({7-k})")
                A(f"v_max3_u32 v22, v22, v{r}, v{r+1}")
                A(f"v_max3_u32 v22, v22, v{r+2}, v{r+3}")
            A(f"""
            v_cmp_eq_u32 vcc, -1, v22
            s_cmp_ge_u32 s49, {SPIN_MAX}
            s_cbranch_scc1 L_got1
            s_and_b64 exec, exec, vcc
            s_cbranch_scc1 L_poll1
            L_got1:
            s_mov_b64 exec, -1
            {"s_waitcnt lgkmcnt(0)" if self.wol or self.wos else ""}
            """)
            self.pad()
            self.stamp(6)
            wl = [
                "v_max_f32_dpp v22, v20, v20 row_ror:1 row_mask:0xf bank_mask:0xf",
                "v_max_f32_dpp v22, v22, v22 row_ror:2 row_mask:0xf bank_mask:0xf",
                "v_max_f32_dpp v22, v22, v22 row_ror:4 row_mask:0xf bank_mask:0xf",
                "v_sub_f32 v22, v20, v22",
                "v_exp_f32 v22, v22",
                "v_mul_f32 v23, v22, v21",
                "v_add_f32_dpp v23, v23, v23 row_ror:1 row_mask:0xf bank_mask:0xf",
                "v_add_f32_dpp v23, v23, v23 row_ror:2 row_mask:0xf bank_mask:0xf",
                "v_add_f32_dpp v23, v23, v23 row_ror:4 row_mask:0xf bank_mask:0xf",
                "v_rcp_f32 v23, v23",
                "v_mul_f32 v22, v22, v23",
            ]
            def fm(u, r, nt):
                c = CR + 16 * u + 4 * nt + r
                op = "v_mul_f32_dpp" if (u == 0 and r == 0) else "v_fmac_f32_dpp"
                return f"{op} v{24+nt}, v22, v{c} row_newbcast:{4*u+r} row_mask:0xf bank_mask:0xf"
            f0 = [fm(0, r, nt) for r in range(4) for nt in range(4)]
            k = 0
            for u in range(2):
                for t in range(4):
                    for nt in range(4):
                        a, b, c = AR + 16 * u + 4 * t, BR + 16 * t + 4 * nt, CR + 16 * u + 4 * nt
                        A(f"v_mfma_f32_16x16x32_bf16 v[{c}:{c+3}], v[{a}:{a+3}], v[{b}:{b+3}], {'0' if t == 0 else f'v[{c}:{c+3}]'}")
                        k += 1
                        if wl: A(wl.pop(0) + "\ns_nop 0")
                        elif k >= 24 and f0:
                            A(f0.pop(0)); A(f0.pop(0))
            assert not wl
            for x in f0: A(x)
            A("s_nop 4")
            for r in range(4):
                for nt in range(4): A(fm(1, r, nt))
        self.jit(3)
        A("s_cmp_eq_u32 s59, 1\ns_mov_b32 s49, 0")
        for nt in range(4): A(f"v_min_u32 v{24+nt}, -2, v{24+nt}")
        A(f"""
        s_cbranch_scc1 L_p2_near
        global_store_dwordx4 v12, v[24:27], s[18:19] sc1
        s_branch L_p2_done
        L_p2_near:
        global_store_dwordx4 v12, v[24:27], s[18:19]
        L_p2_done:
        {"s_barrier" if self.clean else ""}
        {f"global_store_dwordx4 v176, v[{QA}:{QA+3}], s[18:19] sc1" if self.cleanq else ""}
        """)
        self.stamp(7)
        REDO = f"""s_cmp_lg_u32 s49, {self.nre}
            s_cbranch_scc1 L_poll2a
            s_cmp_lg_u32 s59, 1
            s_cbranch_scc1 L_poll2a
            s_mov_b64 s[40:41], exec
            s_mov_b64 exec, -1
            global_store_dwordx4 v12, v[24:27], s[18:19] sc1
            s_mov_b64 exec, s[40:41]
            s_mov_b32 s59, 0"""
        REDO2 = """s_cmp_lg_u32 s59, 1
            s_cbranch_scc1 L_sum2
            global_store_dwordx4 v12, v[24:27], s[18:19] sc1
            L_sum2:"""
        if self.p2depth == 1:
            A(f"""
            s_branch L_poll2a
            L_poll2:
            {"s_sleep %d" % self.t2 if self.t2 else ""}
            {REDO if self.clean else ""}
            L_poll2a:
            global_load_dwordx4 v[28:31], v18, s[18:19] sc1
            s_add_u32 s49, s49, 1
            s_waitcnt vmcnt(0)
            v_max3_u32 v22, v28, v29, v30
            v_max_u32 v22, v22, v31
            v_cmp_eq_u32 vcc, -1, v22
            s_cmp_ge_u32 s49, {SPIN_MAX}
            s_cbranch_scc1 L_got2
            s_and_b64 exec, exec, vcc
            s_cbranch_scc1 L_poll2
            L_got2:
            s_mov_b64 exec, -1
            {REDO2 if self.clean else ""}
            """)
        else:
            A(f"""
            global_load_dwordx4 v[28:31], v18, s[18:19] sc1
            L_poll2:
            global_load_dwordx4 v[32:35], v18, s[18:19] sc1
            s_add_u32 s49, s49, 1
            s_waitcnt vmcnt(1)
            v_max3_u32 v22, v28, v29, v30
            v_max_u32 v22, v22, v31
            v_cmp_eq_u32 vcc, -1, v22
            s_cbranch_vccz L_got2
            global_load_dwordx4 v[28:31], v18, s[18:19] sc1
            s_waitcnt vmcnt(1)
            v_max3_u32 v22, v32, v33, v34
            v_max_u32 v22, v22, v35
            v_cmp_eq_u32 vcc, -1, v22
            s_cmp_lt_u32 s49, {SPIN_MAX}
            s_cbranch_vccz L_got2b
            s_cbranch_scc1 L_poll2
            L_got2b:
            v_mov_b32 v36, v32
            v_mov_b32 v37, v33
            v_mov_b32 v38, v34
            v_mov_b32 v39, v35
            s_branch L_sum2
            L_got2:
            v_mov_b32 v36, v28
            v_mov_b32 v37, v29
            v_mov_b32 v38, v30
            v_mov_b32 v39, v31
            L_sum2:
            s_nop 0
            """)
        self.pad()
        self.stamp(8)
        z = 28 if self.p2depth == 1 else 36
        A(f"""
        v_permlane32_swap_b32 v{z}, v{z+1}
        v_permlane32_swap_b32 v{z+2}, v{z+3}
        s_nop 1
        v_add_f32 v{z}, v{z}, v{z+1}
        v_add_f32 v{z+2}, v{z+2}, v{z+3}
        s_nop 1
        v_permlane16_swap_b32 v{z}, v{z+2}
        s_nop 1
        v_add_f32 v{z}, v{z}, v{z+2}
        s_nop 1
        v_add_f32_dpp v{z}, v{z}, v{z} row_ror:2 row_mask:0xf bank_mask:0xf
        s_nop 1
        v_add_f32_dpp v{z}, v{z}, v{z} row_ror:4 row_mask:0xf bank_mask:0xf
        s_nop 1
        v_add_f32_dpp v{z}, v{z}, v{z} row_ror:8 row_mask:0xf bank_mask:0xf
        s_nop 1
        v_mov_b32_dpp v{z+1}, v{z} quad_perm:[1,1,1,1] row_mask:0xf bank_mask:0xf
        s_mov_b32 exec_lo, 0x00010001
        s_mov_b32 exec_hi, 0x00010001
        v_cvt_pk_bf16_f32 v{z}, v{z}, v{z+1}
        global_store_dword v19, v{z}, s[14:15] {"sc1" if self.clean else ""}
        """)
        self.stamp(9)
        self.stamp_out(10)
        A("L_end:\ns_endpgm")
        if self.pads: A(f"L_pad{self.npad+1}:\ns_branch L_padret")
        A("@@END")

    def tail_incr(self, AR, BR, CR, poll1_loads):
        A = self.A
        def mf(u, t, nt):
            a, b, c = AR + 16 * u + 4 * t, BR + 16 * t + 4 * nt, CR + 16 * u + 4 * nt
            return f"v_mfma_f32_16x16x32_bf16 v[{c}:{c+3}], v[{a}:{a+3}], v[{b}:{b+3}], {'0' if t == 0 else f'v[{c}:{c+3}]'}"
        block = lambda u: [mf(u, t, nt) for t in range(4) for nt in range(4)]
        SUM = (24, 160)
        def fm(u, r, nt):
            op = "v_mul_f32_dpp" if r == 0 else "v_fmac_f32_dpp"
            return f"{op} v{SUM[u]+nt}, v22, v{CR + 16*u + 4*nt + r} row_newbcast:{4*u+r} row_mask:0xf bank_mask:0xf"
        fms = lambda u: [fm(u, r, nt) for r in range(4) for nt in range(4)]
        WL = [
            "v_max_f32_dpp v22, v20, v20 row_ror:1 row_mask:0xf bank_mask:0xf",
            "v_max_f32_dpp v22, v22, v22 row_ror:2 row_mask:0xf bank_mask:0xf",
            "v_max_f32_dpp v22, v22, v22 row_ror:4 row_mask:0xf bank_mask:0xf",
            "v_sub_f32 v22, v20, v22",
            "v_exp_f32 v22, v22",
            "v_mul_f32 v23, v22, v21",
            "v_add_f32_dpp v23, v23, v23 row_ror:1 row_mask:0xf bank_mask:0xf",
            "v_add_f32_dpp v23, v23, v23 row_ror:2 row_mask:0xf bank_mask:0xf",
            "v_add_f32_dpp v23, v23, v23 row_ror:4 row_mask:0xf bank_mask:0xf",
            "v_rcp_f32 v23, v23",
            "v_mul_f32 v22, v22, v23",
        ]
        A("s_mov_b32 s48, 0")
        A("L_chk1:\ns_add_u32 s49, s49, 1\ns_waitcnt vmcnt(8)\nv_max_u32 v31, v20, v21")
        for k in range(8):
            r, d = AR + 4 * k, 22 + k // 4
            A(f"s_waitcnt vmcnt({7-k})")
            A(f"v_max_u32 v{d}, v{r}, v{r+1}" if k % 4 == 0 else f"v_max3_u32 v{d}, v{d}, v{r}, v{r+1}")
            A(f"v_max3_u32 v{d}, v{d}, v{r+2}, v{r+3}")
        A(f"""
        v_cmp_eq_u32 vcc, -1, v31
        v_cmp_eq_u32 s[40:41], -1, v22
        v_cmp_eq_u32 s[50:51], -1, v23
        s_cmp_ge_u32 s49, {SPIN_MAX}
        s_cbranch_scc1 L_got1
        s_or_b64 vcc, vcc, s[40:41]
        s_or_b64 exec, vcc, s[50:51]
        s_cbranch_scc0 L_got1
        """)
        poll1_loads()
        A("""
        ; a half whose sixteen rows are all there is multiplied while the rest is awaited
        s_cmp_lg_u32 s48, 0
        s_cbranch_scc1 L_chk1
        s_mov_b64 s[36:37], exec
        s_cmp_eq_u64 s[40:41], 0
        s_cbranch_scc1 L_half0
        s_cmp_eq_u64 s[50:51], 0
        s_cbranch_scc0 L_chk1
        s_mov_b64 exec, -1
        s_mov_b32 s48, 2
        s_waitcnt lgkmcnt(0)
        """)
        for x in block(1): A(x)
        A("s_mov_b64 exec, s[36:37]\ns_branch L_chk1\nL_half0:\ns_mov_b64 exec, -1\ns_mov_b32 s48, 1\ns_waitcnt lgkmcnt(0)")
        for x in block(0): A(x)
        A("s_mov_b64 exec, s[36:37]\ns_branch L_chk1")
        A("L_got1:\ns_mov_b64 exec, -1\ns_waitcnt lgkmcnt(0)")
        self.pad()
        self.stamp(6)
        def finish(last, other, label):
            wl, fo = list(WL), fms(other)
            for x in block(last):
                A(x)
                if wl: A(wl.pop(0) + "\ns_nop 0")
                else: A(fo.pop(0)); A(fo.pop(0))
            for x in fo: A(x)
            A("s_nop 1")
            for x in fms(last): A(x)
        A("s_cmp_eq_u32 s48, 2\ns_cbranch_scc1 L_fin0\ns_cmp_eq_u32 s48, 1\ns_cbranch_scc1 L_fin1")
        for x in block(0): A(x)
        A("L_fin1:")
        self.pad()
        finish(1, 0, "a")
        A("s_branch L_fin\nL_fin0:")
        self.pad()
        finish(0, 1, "b")
        A("L_fin:")
        self.pad()
        for nt in range(4): A(f"v_add_f32 v{24+nt}, v{24+nt}, v{160+nt}")

    def build(self):
        A = self.A
        self.L.append(HEADER.rstrip("\n"))
        self.L.append(f"; @launch grid=(256,1,1) block=(320,1,1) lds={LDS_SIZE}")
        A('.amdgcn_target "amdgcn-amd-amdhsa--gfx950"')
        A(".text")
        if self.align:
            self.L.append("; unreached padding: puts the entry at the start of a 4 KiB page (instruction prefetch stops at page ends)")
            A(".p2align 12\n.fill 832, 4, 0xbf810000")
        A(f".globl {NAME}\n.p2align 8\n.type {NAME},@function\n{NAME}:")
        A("""
        s_cmp_ge_u32 s2, 256
        s_cbranch_scc1 L_end
        s_load_dwordx16 s[4:19], s[0:1], 0
        """)
        self.stamp(0)
        self.jit(0)
        A("""
        v_lshrrev_b32 v2, 6, v0
        v_and_b32 v1, 63, v0
        s_lshr_b32 s21, s2, 3
        v_readfirstlane_b32 s20, v2
        s_and_b32 s22, s2, 7
        v_lshlrev_b32 v3, 4, v1
        s_mov_b32 s27, 0x20000
        s_mov_b32 s31, 0x20000
        s_and_b32 s54, s21, 24
        s_add_u32 s54, s54, s22
        s_and_b32 s55, s21, 7
        s_lshl_b32 s56, s54, 3
        s_add_u32 s56, s56, s55
        s_lshr_b32 s53, s21, 3
        s_lshl_b32 s34, s53, 20
        s_lshl_b32 s35, s22, 10
        s_add_u32 s34, s34, s35
        s_lshl_b32 s35, s55, 7
        s_add_u32 s34, s34, s35
        s_cmp_lg_u32 s20, 0
        s_cbranch_scc1 L_stream
        """)
        head = self.L
        self.L = []; self.streamer(); st = self.L
        self.L = []; self.helper(); hl = self.L
        parts, cur = {}, None
        for line in hl:
            t = line.strip()
            if t.startswith("@@BEGIN_"): cur = t[8:]; parts[cur] = []
            elif t == "@@END": cur = None
            else: parts[cur].append(line)
        self.L = head
        for line in st:
            t = line.strip()
            if t.startswith("@@"): self.L += parts.pop(t[2:])
            else: self.L.append(line)
        self.L += parts.pop("HTAIL")
        assert not parts
        A("L_code_end:")
        nv = max(self.nv_stream, 180)
        A(f""".section .rodata,"a"
.p2align 6
.amdhsa_kernel {NAME}
  .amdhsa_next_free_vgpr {nv}
  .amdhsa_next_free_sgpr 96
  .amdhsa_accum_offset {(nv + 3) // 4 * 4}
  .amdhsa_group_segment_fixed_size 0
  .amdhsa_kernarg_size 64
  .amdhsa_user_sgpr_count 2
  .amdhsa_user_sgpr_kernarg_segment_ptr 1
  .amdhsa_system_sgpr_workgroup_id_x 1
  .amdhsa_float_denorm_mode_32 3
.end_amdhsa_kernel""")
        txt = "\n".join(self.L) + "\n"
        def rep(a, b, n=1):
            nonlocal txt
            assert txt.count(a) >= 1, a
            txt = txt.replace(a, b, n)
        if "code" in self.abl: rep("global_load_dword v25, v4, s[36:37]", "global_load_dword v25, v5, s[4:5]")
        if "p2clr" in self.abl: rep("global_store_dwordx4 v12, v[8:11], s[18:19] sc1", "s_nop 0")
        if "p2plain" in self.abl: rep("global_store_dwordx4 v12, v[8:11], s[18:19] sc1", "global_store_dwordx4 v12, v[8:11], s[18:19]")
        if "p1clr" in self.abl:
            rep("global_store_dwordx4 v20, v[8:11], s[18:19]\n", "s_nop 0\n"); rep("global_store_dwordx4 v21, v[8:11], s[18:19]\n", "s_nop 0\n")
        if "all" in self.abl: rep("global_load_dword v24, v22, s[18:19] sc1", "v_mov_b32 v24, 8")
        if "flag" in self.abl: rep("global_load_dword v24, v22, s[16:17] sc1", "v_mov_b32 v24, 4")
        if "qld" in self.abl:
            import re
            txt = re.sub(r"global_load_dwordx4 v\[(3[6-9]|[4-6]\d):\d+\], v(23|29), s\[18:19\] offset:\d+ sc1\n", "s_nop 0\n", txt)
        if "wo" in self.abl: rep("s_sub_u32 s26, 0x400000, s35", "s_mov_b32 s26, 0")
        if "wq" in self.abl: rep("s_sub_u32 s38, 0x400000, s34", "s_mov_b32 s38, 0")
        return txt


if __name__ == "__main__":
    out = sys.argv[1] if len(sys.argv) > 1 else "standalone__gqa_block_cached__decode.s"
    kw = eval("dict(" + (sys.argv[2] if len(sys.argv) > 2 else "") + ")")
    open(out, "w").write(Gen(**kw).build())
```

```python
import sys, math, struct

NAME = "standalone__gqa_block_cached__decode_kernel"
HEADER = """; Kernarg layout for this problem (64 bytes, ptrs only, base s[0:1]):
;   offset  24: d_in[3] wq  shape=(512, 4096) dtype=bfloat16
;   offset  32: d_in[4] wo  shape=(4096, 512) dtype=bfloat16
;   offset  48: d_debug   256 bytes (zero at entry: first counters)
;   offset  56: d_ws      workspace (hand-offs between workgroups)
;
; One persistent launch of 256 workgroups x 5 waves; wg = 8a + x.
; Hand-offs: counters are zeroed and slots are filled with an "empty" word (-1) inside the launch, counters say
; when that has happened, payload words are never -1. Each workgroup reports the die it runs on; stores stop at
; the die's L2 only where all readers were seen on that die, otherwise they are written through.
"""

WS_Q, WS_P1, WS_ML, WS_P2, WS_CNT, WS_STAMP = 0x0, 0x40000, 0x80000, 0x90000, 0xd0000, 0x200000
CS = 4352
LDS_W, LDS_Q, LDS_O, LDS_ML, LDS_FLAG, LDS_WF, LDS_SIZE = 0, 16384, 17408, 25600, 25728, 25744, 25760
SPIN_MAX = 100000


P2ADDR = f"""        s_and_b32 s38, s21, 3
        s_lshl_b32 s39, s22, 2
        s_add_u32 s38, s38, s39
        s_lshr_b32 s39, s21, 2
        s_lshl_b32 s35, s38, 3
        s_add_u32 s35, s35, s39
        s_lshl_b32 s35, s35, 10
        s_add_u32 s35, s35, {WS_P2}
        v_add_u32 v12, s35, v3
"""
P1ADDR = f"""        s_lshl_b32 s35, s56, 10
        s_add_u32 s35, s35, {WS_P1}
        v_add_u32 v20, s35, v3
        s_lshl_b32 s35, s56, 7
        s_add_u32 s35, s35, {WS_ML}
        v_add_u32 v21, s35, v3
"""
P1CLR = """global_store_dwordx4 v20, v[8:11], s[18:19]
s_mov_b64 exec, 0xff
global_store_dwordx4 v21, v[8:11], s[18:19]
s_mov_b64 exec, -1"""
P2CLR = "global_store_dwordx4 v12, v[8:11], s[18:19] sc1"


WOSETUP = f"""        ; wo block: rows s38*128.., columns s39*64..
        s_lshl_b32 s35, s38, 17
        s_lshl_b32 s41, s39, 7
        s_add_u32 s35, s35, s41
        s_add_u32 s24, s12, s35
        s_addc_u32 s25, s13, 0
        s_sub_u32 s26, 0x400000, s35
        s_mov_b32 m0, {LDS_W}
        s_mov_b32 s33, 0
"""


class Gen:
    def __init__(self, DP=5, EX=2, FR=3, W=5, WP=5, E=3, W2=7, pol="nt", wpol="nt", fsleep=16, csleep=24,
                 wofirst=2, wopace=1, ms=(), table=(0, 0, 0, 0, 1, 2, 4, 8), base=0, lagk=2, b0="first", neg=False, rk=256, w8=0, etab=None, t1=0, t2=0, nopoll=False, clean=False, cleanq=False, nre=3, vtouch=False, jitter=0, skewb=0, skewx=0, perm=None, skewtab=None, WC=None, xtab=None, cpl=3, hprio=3, sprio=0, wsleep=0, lateflag=False, wol=0, hoist=(), wos=0, fine=0, abl=(), p2early=0, seq=None, wopre=0, burst=0, incr=False, pads=False, W0=None, N0=0, wtrig=None, wwait=False, wpace=None,
                 split=2, align=True, forcefar=False, p2depth=1, stamps=False, prog=False):
        self.__dict__.update(locals())
        self.L = []

    def A(self, s):
        for line in s.strip("\n").split("\n"):
            line = line.strip()
            if not line:
                continue
            self.L.append(line if line.endswith(":") or line.startswith(".") else "    " + line)

    def stamp(self, idx):
        if self.stamps:
            self.A(f"s_memrealtime s[{60+2*idx}:{61+2*idx}]")

    def jit(self, k):
        if self.jitter:
            self.jn = getattr(self, "jn", 0) + 1
            mul = [0x9E3779B1, 0x85EBCA77, 0xC2B2AE3D, 0x27D4EB2F, 0x165667B1, 0xD3A2646D, 0xFD7046C5, 0xB55A4F09][(k + self.jitter) % 8]
            self.A(f"""
            s_add_u32 s94, s2, {17 * self.jitter + k}
            s_mul_i32 s94, s94, {mul:#x}
            s_lshr_b32 s94, s94, 28
            s_cmp_lt_u32 s94, 12
            s_cbranch_scc1 L_j{self.jn}
            s_sub_u32 s94, s94, 11
            s_lshl_b32 s94, s94, 2
            L_jl{self.jn}:
            s_sleep 127
            s_sub_u32 s94, s94, 1
            s_cmp_lg_u32 s94, 0
            s_cbranch_scc1 L_jl{self.jn}
            L_j{self.jn}:
            """)

    def skew_code(self):
        c = ""
        if self.perm:
            km, ka = self.perm
            c += f"s_mul_i32 s93, s54, {km}\ns_and_b32 s93, s93, 15\ns_lshl_b32 s93, s93, 18\ns_add_u32 s93, s93, 0x20000\n"
            c += f"s_mul_i32 s35, s54, {ka}\ns_and_b32 s35, s35, 31\ns_lshl_b32 s35, s35, 17\ns_add_u32 s33, s33, s35\n"
        elif self.skewtab:
            tb = sum(v << (8 * i) for i, v in enumerate(self.skewtab))
            c += f"s_lshl_b32 s35, s53, 3\ns_lshr_b32 s35, {tb:#x}, s35\n"
            if self.xtab:
                tx = sum(v << (4 * i) for i, v in enumerate(self.xtab))
                c += f"s_lshl_b32 s36, s22, 2\ns_lshr_b32 s36, {tx:#x}, s36\ns_and_b32 s36, s36, 15\ns_lshl_b32 s36, s36, 1\ns_add_u32 s35, s35, s36\n"
            c += "s_and_b32 s35, s35, 31\ns_lshl_b32 s35, s35, 17\ns_add_u32 s33, s33, s35\n"
        elif self.skewb or self.skewx:
            c += f"s_mul_i32 s35, s53, {self.skewb}\n"
            if self.skewx: c += f"s_mul_i32 s36, s22, {self.skewx}\ns_add_u32 s35, s35, s36\n"
            c += "s_and_b32 s35, s35, 31\ns_lshl_b32 s35, s35, 17\ns_add_u32 s33, s33, s35\n"
        return c

    def bump(self):
        if self.perm: return "s_add_u32 s33, s33, s93\ns_and_b32 s33, s33, 0x3fffff"
        if self.skewb or self.skewx or self.skewtab: return "s_add_u32 s33, s33, 0x20000\ns_and_b32 s33, s33, 0x3fffff"
        return "s_add_u32 s33, s33, 0x20000"

    def pad(self):
        if self.pads:
            n = self.npad = getattr(self, "npad", 0) + 1
            self.A(f"L_pad{n}:\ns_cbranch_execz L_pad{n+1}")

    def progstamp(self):
        if self.prog:
            self.A("s_memrealtime s[80:81]\ns_mov_b32 m0, s82\ns_add_u32 s82, s82, 1\ns_waitcnt lgkmcnt(0)\nv_writelane_b32 v26, s80, m0")

    def stamp_out(self, n):
        if not self.stamps:
            return
        A = self.A
        A("s_waitcnt lgkmcnt(0)")
        A("s_mov_b64 exec, 1")
        A(f"s_mul_i32 s58, s56, 5\ns_add_u32 s58, s58, s20\ns_lshl_b32 s58, s58, 6\ns_add_u32 s58, s58, {WS_STAMP}")
        A("v_mov_b32 v1, s58")
        for i in range(n):
            A(f"v_mov_b32 v2, s{60+2*i}\nglobal_store_dword v1, v2, s[18:19] offset:{4*i}")
        A("v_mov_b32 v2, s57\nglobal_store_dword v1, v2, s[18:19] offset:56")
        A("s_getreg_b32 s58, hwreg(HW_REG_XCC_ID)\nv_mov_b32 v2, s58\nglobal_store_dword v1, v2, s[18:19] offset:60")

    def streamer(self):
        A, DP, EX, W, WP, E, W2, pol = self.A, self.DP, self.EX, self.W, self.WP, self.E, self.W2, self.pol
        vOK, vOV, vMA, vMB = 2, 3, 4, 5
        vQ, vO = 8, 12
        vM, vL, vMX, vT, vAL, vAO = 20, 21, 22, 23, 24, 25
        vD, vS, vP, RING = 28, 44, 48, 56
        self.nv_stream = RING + 32 * DP
        C0 = DP + EX
        assert 1 <= EX < DP and E >= 1

        def slot(ch): return ch if ch < DP else min(ch, C0) - DP
        def reg(ch, k): return RING + 32 * slot(ch) + 4 * k
        st = dict(n=-4, landed=-4)

        def emit_load(ch, k):
            r = reg(ch, k)
            if k < 4: A(f"buffer_load_dwordx4 v[{r}:{r+3}], v{vOK}, s[24:27], s33 offen offset:{k*1024} {pol}")
            else: A(f"buffer_load_dwordx4 v[{r}:{r+3}], v{vOV}, s[28:31], s33 offen offset:{(k-4)*1024} {pol}")
            if k == 7: self.progstamp()

        def issue(w):
            i = st["n"]
            if i - st["landed"] >= w:
                A(f"s_waitcnt vmcnt({w-1})"); st["landed"] = i - (w - 1)
            if i < 0:
                A(f"buffer_load_dwordx4 v7, s[36:39], s40 offen {self.wpol} lds")
                if i < -1: A("s_add_u32 m0, m0, 0x400\ns_add_u32 s40, s40, 0x10000")
            else:
                if i % 8 == 0 and i > 0: A(self.bump())
                emit_load(i // 8, i % 8)
            st["n"] += 1

        def need(i):
            if st["landed"] <= i:
                A(f"s_waitcnt vmcnt({st['n'] - 1 - i})"); st["landed"] = i + 1

        def qk(ch, c):
            A(f"v_mfma_f32_16x16x32_bf16 v[{vD+4*c}:{vD+4*c+3}], v[{reg(ch,c)}:{reg(ch,c)+3}], v[{vQ}:{vQ+3}], 0")

        def pv(ch, c):
            r = reg(ch, 4 + c)
            A(f"v_mfma_f32_16x16x16_bf16 v[{vO}:{vO+3}], v[{vP+2*c}:{vP+2*c+1}], v[{r}:{r+1}], v[{vO}:{vO+3}]")
            A(f"v_mfma_f32_16x16x16_bf16 v[{vO+4}:{vO+7}], v[{vP+2*c}:{vP+2*c+1}], v[{r+2}:{r+3}], v[{vO+4}:{vO+7}]")

        def scores():
            A("s_nop 5")
            for c in range(4):
                A(f"v_mov_b32_dpp v{vS+c}, v{vD+4*c} quad_perm:[0,0,0,0] row_mask:0xf bank_mask:0xf")
            for r in range(1, 4):
                for c in range(4):
                    A(f"v_add_f32_dpp v{vS+c}, v{vD+4*c+r}, v{vS+c} quad_perm:[{r},{r},{r},{r}] row_mask:0xf bank_mask:0xf")
            A(f"""
            v_max3_f32 v{vMX}, v{vS}, v{vS+1}, v{vS+2}
            v_max_f32 v{vMX}, v{vMX}, v{vS+3}
            v_mul_f32 v{vMX}, s42, v{vMX}
            """)

        def probs():
            for c in range(4): A(f"v_fma_f32 v{vS+c}, v{vS+c}, s42, -v{vM}")
            for c in range(4): A(f"v_exp_f32 v{vS+c}, v{vS+c}")
            for c in range(4): A(f"v_cvt_pk_bf16_f32 v{vP+2*c+1}, v{vS+c}, v{vS+c}")
            A(f"v_add_f32 v{vS}, v{vS}, v{vS+1}")
            A(f"v_add_f32 v{vS+2}, v{vS+2}, v{vS+3}")
            for c in range(4):
                A(f"v_and_b32 v{vP+2*c}, v{vP+2*c+1}, v{vMA}")
                A(f"v_and_b32 v{vP+2*c+1}, v{vP+2*c+1}, v{vMB}")
            A(f"v_add_f32 v{vL}, v{vL}, v{vS}")
            A(f"v_add_f32 v{vL}, v{vL}, v{vS+2}")

        def extract(cs, pad):
            for r in range(4):
                for c in cs:
                    if r == 0: A(f"v_mov_b32_dpp v{vS+c}, v{vD+4*c} quad_perm:[0,0,0,0] row_mask:0xf bank_mask:0xf")
                    else: A(f"v_add_f32_dpp v{vS+c}, v{vD+4*c+r}, v{vS+c} quad_perm:[{r},{r},{r},{r}] row_mask:0xf bank_mask:0xf")
                if pad and r < 3: A(f"s_nop {pad-1}")

        def prob1(c):
            A(f"""
            v_fma_f32 v{vS+c}, v{vS+c}, s42, -v{vM}
            v_exp_f32 v{vS+c}, v{vS+c}
            s_nop 0
            v_cvt_pk_bf16_f32 v{vP+2*c+1}, v{vS+c}, v{vS+c}
            v_and_b32 v{vP+2*c}, v{vP+2*c+1}, v{vMA}
            v_and_b32 v{vP+2*c+1}, v{vP+2*c+1}, v{vMB}
            v_add_f32 v{vL}, v{vL}, v{vS+c}
            """)

        def fine_step(k, tag):
            if k == 2:
                A("s_nop 3"); extract([0, 1], 1)
            if k == 3:
                A("s_nop 3"); extract([2], 2) if False else None
                A("s_nop 3"); extract([2, 3], 1)
                A(f"""
                v_max3_f32 v{vMX}, v{vS}, v{vS+1}, v{vS+2}
                v_max_f32 v{vMX}, v{vMX}, v{vS+3}
                v_mul_f32 v{vMX}, s42, v{vMX}
                v_cmp_gt_f32 vcc, v{vMX}, v{vM}
                s_cbranch_vccz L_keep{tag}
                s_call_b64 s[44:45], L_rescale
                L_keep{tag}:
                """)
                prob1(0)
            if k in (4, 5, 6): prob1(k - 3)

        def softmax(tag):
            scores()
            A(f"""
            v_cmp_gt_f32 vcc, v{vMX}, v{vM}
            s_cbranch_vccz L_keep{tag}
            s_call_b64 s[44:45], L_rescale
            L_keep{tag}:
            """)
            probs()

        def wavemax():
            A(f"""
            v_mov_b32 v{vT}, v{vMX}
            s_nop 1
            v_permlane16_swap_b32 v{vMX}, v{vT}
            s_nop 1
            v_max_f32 v{vMX}, v{vMX}, v{vT}
            v_mov_b32 v{vT}, v{vMX}
            s_nop 1
            v_permlane32_swap_b32 v{vMX}, v{vT}
            s_nop 1
            v_max3_f32 v{vMX}, v{vMX}, v{vT}, v{vM}
            """)

        def rescale():
            A(f"""
            v_sub_f32 v{vAL}, v{vM}, v{vMX}
            v_exp_f32 v{vAL}, v{vAL}
            v_mov_b32 v{vM}, v{vMX}
            v_mul_f32 v{vL}, v{vL}, v{vAL}
            s_nop 0
            """)
            for g in range(4):
                A(f"v_mov_b32_dpp v{vAO}, v{vAL} row_newbcast:{4*g} row_mask:{1<<g:#x} bank_mask:0xf")
                A("s_nop 1")
            for r in range(8): A(f"v_mul_f32 v{vO+r}, v{vO+r}, v{vAO}")

        A("@@HHEAD")
        A(f"""
        L_stream:
        {"s_setprio %d" % self.sprio if self.sprio else ""}
        v_and_b32 v6, 3, v1
        v_lshlrev_b32 v{vOK}, 4, v6
        v_bfe_u32 v7, v1, 2, 2
        v_lshl_add_u32 v{vOK}, v7, 8, v{vOK}
        v_lshrrev_b32 v7, 4, v1
        v_lshl_add_u32 v{vOK}, v7, 6, v{vOK}
        v_lshrrev_b32 v7, 3, v1
        v_lshlrev_b32 v7, 13, v7
        v_and_b32 v8, 7, v1
        v_lshl_add_u32 v7, v8, 4, v7
        s_sub_u32 s40, s20, 1
        s_lshl_b32 m0, s40, 12
        s_lshl_b32 s33, s55, 2
        s_add_u32 s33, s33, s40
        s_lshl_b32 s33, s33, 12
        {self.skew_code()}
        s_lshl_b32 s40, s40, 18
        s_sub_u32 s38, 0x400000, s34
        s_mov_b32 s39, 0x20000
        s_lshl_b32 s35, s54, 22
        s_mov_b32 s26, 0x400000
        s_mov_b32 s30, 0x400000
        {"s_mov_b32 s82, 0" if self.prog else ""}
        {"v_mov_b32 v26, 0" if self.prog else ""}
        s_waitcnt lgkmcnt(0)
        s_add_u32 s36, s10, s34
        s_addc_u32 s37, s11, 0
        s_add_u32 s24, s6, s35
        s_addc_u32 s25, s7, 0
        s_add_u32 s28, s8, s35
        s_addc_u32 s29, s9, 0
        """)
        told = False
        if self.b0 == "first": A("s_barrier")
        for i in range(-4, 8 * DP):
            issue(self.W0 if self.W0 and i < -4 + self.W0 + self.N0 else WP)
            if st["landed"] >= 0 and not told:
                A(f"s_mov_b64 exec, 1\nds_write_b32 v{vP}, v{vP} offset:{LDS_WF}\ns_mov_b64 exec, -1"); told = True
            if i == (self.W0 or WP) - 5:
                bits = struct.unpack("<I", struct.pack("<f", math.log2(math.e) / math.sqrt(128.0)))[0]
                A(f"""
                v_mov_b32 v7, 0xffff
                v_mov_b32 v{vT}, 0xffff0000
                v_cmp_eq_u32 vcc, 0, v6
                v_cmp_eq_u32 s[46:47], 1, v6
                v_cmp_eq_u32 s[48:49], 2, v6
                v_cmp_eq_u32 s[50:51], 3, v6
                v_cndmask_b32 v{vMA}, 0, v7, vcc
                v_cndmask_b32 v{vMA}, v{vMA}, v{vT}, s[46:47]
                v_cndmask_b32 v{vMB}, 0, v7, s[48:49]
                v_cndmask_b32 v{vMB}, v{vMB}, v{vT}, s[50:51]
                v_mov_b32 v{vM}, 0xff7fffff
                v_mov_b32 v{vL}, 0
                """)
                for r in range(8): A(f"v_mov_b32 v{vO+r}, 0")
                A(f"s_mov_b32 s42, {bits:#x}")
                if self.stamps: A("s_mov_b32 s57, 0")
                A(f"s_lshl_b32 s40, s20, 2\ns_sub_u32 s40, s40, 4\nv_mov_b32 v{vP}, s40")
                if self.b0 != "first": A("s_barrier")
        self.stamp(1)
        A("s_branch L_stream2")
        A("@@HFRONT")
        A("L_rescale:")
        wavemax()
        rescale()
        A("s_setpc_b64 s[44:45]")
        A(f"""
        L_stream2:
        s_mov_b32 s43, 0
        L_waitq:
        ds_read_b128 v[{vQ}:{vQ+3}], v{vOV} offset:{LDS_Q}
        s_add_u32 s43, s43, 1
        s_waitcnt lgkmcnt(0)
        v_max3_u32 v{vT}, v{vQ}, v{vQ+1}, v{vQ+2}
        v_max_u32 v{vT}, v{vT}, v{vQ+3}
        v_cmp_eq_u32 vcc, -1, v{vT}
        s_cbranch_vccz L_haveq
        s_sleep 1
        s_cmp_lt_u32 s43, {SPIN_MAX * 80}
        s_cbranch_scc1 L_waitq
        L_haveq:
        """)
        self.stamp(2)
        target = 8 * C0 + W
        todo = target - st["n"]
        points, done = 2 * C0, 0
        def free_limit(ch, half):
            lim = st["n"]
            while lim < target:
                prev = lim // 8 - DP
                if prev < ch or (prev == ch and lim % 8 < 4 * half): lim += 1
                else: break
            return lim
        for ch in range(C0):
            if ch == self.split:
                A("s_branch L_stream3\n@@HMID\nL_stream3:")
            for half in (1, 2):
                for c in range(4):
                    need(8 * ch + 4 * (half - 1) + c)
                    (qk if half == 1 else pv)(ch, c)
                done += 1
                want = 8 * DP + self.FR + -(-(todo - self.FR) * done // points)
                lim = free_limit(ch, half)
                while st["n"] < min(want, lim): issue(self.WC or W)
                if half == 1: softmax(f"p{ch}")
        assert st["n"] == target, (st, target)
        A(f"s_mov_b32 s43, {32 - C0}")
        if self.ms:
            spread = [0x00, 0x10, 0x11, 0x49, 0x55, 0x6d, 0x77, 0x7f, 0xff]
            enc = lambda n: spread[n] if n >= 0 else spread[-n] << 8
            if self.etab:
                assert not self.neg
                tb = sum((spread[n] | (e << 8)) << (16 * i) for i, (n, e) in enumerate(zip(self.table, self.etab)))
                enc = lambda n: spread[n] | (E << 8)
            else:
                tb = sum(enc(n) << (16 * i) for i, n in enumerate(self.table))
            mm = 0
            for m in self.ms: mm |= (1 << m) | (1 << (m - self.lagk)) | (1 << (m - self.lagk - 1))
            A(f"""
            s_mov_b32 s52, {enc(self.base)}
            s_mov_b32 s53, {mm:#x}
            s_mov_b32 s46, 0
            s_mov_b32 s41, {self.rk + 32}
            s_mul_i32 s35, s21, {CS}
            s_add_u32 s35, s35, {WS_CNT}
            s_add_u32 s48, s18, s35
            s_addc_u32 s49, s19, 0
            """)
            for i in range(4): A(f"s_mov_b32 s{84+i}, {(tb >> (32*i)) & 0xffffffff:#x}")

        def note():
            A(f"s_mov_b64 exec, 1\nds_write_b32 v{vOV}, v{vOV} offset:{LDS_FLAG}\ns_mov_b64 exec, -1")
        def loop(label, w, until, ctl):
            A(f"{label}:")
            if label == "L_loop2" and self.wtrig and 1 < self.wtrig < E:
                A(f"s_cmp_lg_u32 s43, {self.wtrig}\ns_cbranch_scc1 L_nonote"); note(); A("L_nonote:")
            def iss(k):
                if k + w == 8: A(self.bump() + "\ns_sub_u32 s43, s43, 1")
                emit_load(C0, (k + w) % 8)
            for k in range(8):
                if ctl and k in self.hoist:
                    A(f"s_waitcnt vmcnt({w})")
                elif ctl:
                    A(f"s_bitcmp1_b32 s52, {k}\ns_cbranch_scc1 {label}_w{k}")
                    if self.neg and k in (0, 4):
                        A(f"s_bitcmp0_b32 s52, {k+8}\ns_cbranch_scc1 {label}_v{k}\ns_waitcnt vmcnt({w-2})\n{label}_v{k}:")
                    A(f"s_waitcnt vmcnt({w-1})\n{label}_w{k}:")
                    iss(k)
                    A(f"s_waitcnt vmcnt({w})")
                elif label == "L_loop" and ([0x00, 0x10, 0x11, 0x49, 0x55, 0x6d, 0x77, 0x7f, 0xff][self.w8] >> k) & 1:
                    iss(k)
                    A(f"s_waitcnt vmcnt({w})")
                else:
                    A(f"s_waitcnt vmcnt({w-1})")
                    if w < 8: iss(k)
                if k < 4: qk(C0, k)
                else: pv(C0, k - 4)
                if ctl and k + 1 in self.hoist: iss(k + 1)
                if w == 8: iss(k)
                if self.fine and (label == "L_loop" or self.fine > 1): fine_step(k, label)
                elif k == 3: softmax(label)
            if ctl:
                A(f"s_bitcmp1_b32 s53, s43\ns_cbranch_scc0 {label}_m\ns_call_b64 s[44:45], L_rank\n{label}_m:")
            if ctl and self.etab:
                A(f"s_lshr_b32 s50, s52, 8\ns_cmp_gt_u32 s43, s50\ns_cbranch_scc1 {label}")
            else:
                A(f"s_cmp_lg_u32 s43, {until}\ns_cbranch_scc1 {label}")
        loop("L_loop", W, E, bool(self.ms))
        A("s_branch L_page2")
        if self.ms:
            A(f"""
            ; At a milestone wave 1 counts itself in among its seven peers (same a); how many were there first decides
            ; how many loads the four waves keep in flight. Calls 1 and 2: wave 1 asks and reads the answer; call 3: all take it.
            L_rank:
            s_add_u32 s46, s46, 1
            v_mov_b32 v{vT}, 0
            s_cmp_eq_u32 s46, 3
            s_cbranch_scc1 L_rank_take
            s_cmp_lg_u32 s20, 1
            s_cbranch_scc1 L_rank_ret
            s_cmp_eq_u32 s46, 2
            s_cbranch_scc1 L_rank_use
            s_mov_b32 s47, 1
            s_atomic_add s47, s[48:49], s41 glc
            s_add_u32 s41, s41, 4
            L_rank_ret:
            s_setpc_b64 s[44:45]
            L_rank_use:
            s_waitcnt lgkmcnt(0)
            s_and_b32 s47, s47, 7
            s_lshr_b32 m0, s47, 1
            s_lshl_b32 s47, s47, 4
            s_movrels_b32 s36, s84
            s_lshr_b32 s52, s36, s47
            s_and_b32 s52, s52, 0xffff
            v_mov_b32 v{vMX}, s52
            ds_write_b32 v{vT}, v{vMX} offset:{LDS_FLAG+8}
            s_setpc_b64 s[44:45]
            L_rank_take:
            ds_read_b32 v{vT}, v{vT} offset:{LDS_FLAG+8}
            s_mov_b32 s46, 0
            s_waitcnt lgkmcnt(0)
            v_readfirstlane_b32 s47, v{vT}
            s_cmp_eq_u32 s47, -1
            s_cselect_b32 s52, s52, s47
            s_setpc_b64 s[44:45]
            """)
        if self.align is True: A(".p2align 12")
        A("L_helper3:\ns_branch L_helper4")
        A("L_page2:")
        for k in range(W, W2): emit_load(C0, k)
        if self.wtrig == E: note()
        a0, a1, a2, a3, a4, a5, a6, a7 = range(RING, RING + 8)
        A(f"""
        s_sub_u32 s34, s20, 1
        v_lshrrev_b32 v6, 4, v1
        v_and_b32 v7, 15, v1
        v_lshlrev_b32 v{a0}, 9, v6
        v_lshl_add_u32 v{a0}, v7, 5, v{a0}
        s_lshl_b32 s35, s34, 11
        v_add_u32 v{a0}, s35, v{a0}
        s_lshl_b32 s41, s34, 2
        v_lshl_add_u32 v{a1}, v1, 2, s41
        v_and_b32 v{a2}, 12, v1
        v_lshlrev_b32 v{a2}, 2, v{a2}
        s_lshl_b32 s35, s34, 9
        v_lshl_add_u32 v{a3}, v1, 3, s35
        s_lshl_b32 s35, s34, 4
        v_mov_b32 v{a4}, s35
        s_lshl_b32 s35, s56, 10
        s_lshl_b32 s36, s34, 8
        s_add_u32 s35, s35, s36
        s_add_u32 s35, s35, {WS_P1}
        v_lshl_add_u32 v{a5}, v1, 2, s35
        s_lshl_b32 s35, s56, 4
        s_add_u32 s35, s35, s34
        s_lshl_b32 s35, s35, 3
        s_add_u32 s35, s35, {WS_ML}
        v_mov_b32 v{a6}, s35
        v_mov_b32 v{a7}, 0
        """)
        nwo = self.wos // 4
        if nwo:
            A(f"""
            s_and_b32 s35, s21, 3
            s_lshl_b32 s36, s22, 2
            s_add_u32 s35, s35, s36
            s_lshl_b32 s35, s35, 17
            s_lshr_b32 s36, s21, 2
            s_lshl_b32 s36, s36, 7
            s_add_u32 s35, s35, s36
            s_add_u32 s36, s12, s35
            s_addc_u32 s37, s13, 0
            s_sub_u32 s38, 0x400000, s35
            s_mov_b32 s39, 0x20000
            s_mul_i32 s35, s34, {nwo}
            s_add_u32 s35, s35, {16 - self.wos}
            s_lshl_b32 s40, s35, 13
            s_lshl_b32 s51, s35, 10
            v_lshrrev_b32 v6, 3, v1
            v_and_b32 v7, 7, v1
            v_lshlrev_b32 v7, 4, v7
            v_lshl_add_u32 v27, v6, 10, v7
            """)
        NB = self.burst
        assert not (NB and (self.etab or nwo)) and E >= NB + 1
        if self.etab:
            A("s_cmp_eq_u32 s43, 1\ns_cbranch_scc1 L_last")
            loop("L_loop2", W2, 1, False)
            A("L_last:")
        elif E > NB + 1: loop("L_loop2", W2, NB + 1, False)
        CL = C0
        if NB:
            free = [c for c in range(1, DP) if slot(c) != slot(C0)][:NB]
            for k2 in range(W2, 8): emit_load(C0, k2)
            for c in free:
                A(self.bump())
                for k2 in range(8): emit_load(c, k2)
            seq_ch = [C0] + free
            for j, c in enumerate(seq_ch[:-1]):
                left = 8 * (NB - j)
                for k in range(8):
                    A(f"s_waitcnt vmcnt({7 - k + left})")
                    if k < 4: qk(c, k)
                    else: pv(c, k - 4)
                    if k == 3: softmax(f"b{j}")
            CL = seq_ch[-1]
        self.jit(2)
        if self.wtrig == 1: note()
        for k in range(4):
            if k == 0 and not NB:
                A(f"s_waitcnt vmcnt({W2-1})")
                for k2 in range(W2, 8): emit_load(C0, k2)
                if nwo: A("s_mov_b32 m0, s51")
                for i in range(nwo):
                    A(f"s_nop 0\nbuffer_load_dwordx4 v27, s[36:39], s40 offen {self.wpol} lds")
                    if i < nwo - 1: A("s_add_u32 m0, m0, 0x400\ns_add_u32 s40, s40, 0x2000")
            else: A(f"s_waitcnt vmcnt({7-k+nwo})")
            qk(CL, k)
        scores()
        wavemax()
        A(f"""
        s_mov_b64 exec, 0x1111
        ds_write_b32 v{a1}, v{vMX} offset:{LDS_ML}
        s_mov_b64 exec, -1
        s_waitcnt lgkmcnt(0)
        s_barrier
        ds_read_b128 v[28:31], v{a2} offset:{LDS_ML}
        ds_read_b32 v{a7}, v{a7} offset:{LDS_FLAG+4}
        s_waitcnt lgkmcnt(1)
        v_max3_f32 v{vMX}, v28, v29, v30
        v_max_f32 v{vMX}, v{vMX}, v31
        """)
        rescale()
        probs()
        A(f"""
        v_mov_b32 v{vT}, v{vL}
        v_readlane_b32 s50, v{vM}, s41
        s_waitcnt lgkmcnt(0)
        v_permlane16_swap_b32 v{vL}, v{vT}
        v_cmp_eq_u32 vcc, 1, v{a7}
        s_min_u32 s50, s50, -2
        v_add_f32 v{vL}, v{vL}, v{vT}
        v_mov_b32 v{vT}, v{vL}
        v_mov_b32 v44, s50
        s_nop 0
        v_permlane32_swap_b32 v{vL}, v{vT}
        s_nop 0
        v_add_f32 v{vL}, v{vL}, v{vT}
        s_mov_b64 exec, 0x1111
        ds_write_b32 v{a1}, v{vL} offset:{LDS_ML+64}
        s_mov_b64 exec, -1
        """)
        for c in range(4):
            A(f"s_waitcnt vmcnt({3-c+nwo})")
            pv(CL, c)
        self.stamp(3)
        A(f"""
        s_nop 6
        ds_write_b128 v{a0}, v[{vO}:{vO+3}] offset:{LDS_O}
        ds_write_b128 v{a0}, v[{vO+4}:{vO+7}] offset:{LDS_O+16}
        s_waitcnt lgkmcnt(0)
        s_barrier
        ds_read_b64 v[36:37], v{a3} offset:{LDS_O}
        ds_read_b64 v[38:39], v{a3} offset:{LDS_O+2048}
        ds_read_b64 v[40:41], v{a3} offset:{LDS_O+4096}
        ds_read_b64 v[42:43], v{a3} offset:{LDS_O+6144}
        ds_read_b128 v[32:35], v{a4} offset:{LDS_ML+64}
        s_waitcnt lgkmcnt(3)
        v_add_f32 v36, v36, v38
        v_add_f32 v37, v37, v39
        s_waitcnt lgkmcnt(1)
        v_add_f32 v40, v40, v42
        v_add_f32 v41, v41, v43
        v_add_f32 v36, v36, v40
        v_add_f32 v37, v37, v41
        v_cvt_pk_bf16_f32 v48, v36, v37
        s_waitcnt lgkmcnt(0)
        v_min_u32 v48, -2, v48
        v_add_f32 v32, v32, v33
        v_add_f32 v34, v34, v35
        v_mov_b32_dpp v49, v48 quad_perm:[1,1,1,1] row_mask:0xf bank_mask:0xf
        v_mov_b32_dpp v50, v48 quad_perm:[2,2,2,2] row_mask:0xf bank_mask:0xf
        v_mov_b32_dpp v51, v48 quad_perm:[3,3,3,3] row_mask:0xf bank_mask:0xf
        v_add_f32 v45, v32, v34
        s_mov_b32 exec_lo, 0x11111111
        s_mov_b32 exec_hi, 0x11111111
        v_min_u32 v45, -2, v45
        s_cbranch_vccz L_pub_far
        global_store_dwordx4 v{a5}, v[48:51], s[18:19]
        s_mov_b64 exec, 1
        global_store_dwordx2 v{a6}, v[44:45], s[18:19]
        {"s_memrealtime s[68:69]" if self.stamps else ""}
        {"" if self.clean else ("s_branch L_pub_done" if self.stamps or self.wos else "s_endpgm")}
        {"s_barrier" if self.clean else ""}
        {"s_mov_b32 exec_lo, 0x11111111" if self.clean else ""}
        {"s_mov_b32 exec_hi, 0x11111111" if self.clean else ""}
        L_pub_far:
        global_store_dwordx4 v{a5}, v[48:51], s[18:19] sc1
        s_mov_b64 exec, 1
        global_store_dwordx2 v{a6}, v[44:45], s[18:19] sc1
        {"s_cbranch_vccnz L_pub_done" if self.stamps else ""}
        {"s_memrealtime s[68:69]" if self.stamps else ""}
        L_pub_done:
        {"s_waitcnt vmcnt(2)" if self.wos else ""}
        {"s_barrier" if self.wos else ""}
        """)
        if self.prog:
            A(f"s_mov_b64 exec, -1\ns_lshl_b32 s58, s2, 2\ns_add_u32 s58, s58, s20\ns_sub_u32 s58, s58, 1\ns_lshl_b32 s58, s58, 8\ns_add_u32 s58, s58, {WS_STAMP + 0x100000}")
            A("v_lshl_add_u32 v2, v1, 2, s58\nglobal_store_dword v2, v26, s[18:19]")
        self.stamp_out(5)
        A("s_endpgm")

    def nibble_sum(self, d, s, t):
        self.A(f"""
        v_and_b32 v{d}, 0x0f0f0f0f, v{s}
        v_lshrrev_b32 v{t}, 4, v{s}
        v_and_b32 v{t}, 0x0f0f0f0f, v{t}
        v_add_u32 v{d}, v{d}, v{t}
        v_sad_u8 v{d}, v{d}, 0, 0
        """)

    def helper(self):
        A, wpol = self.A, self.wpol
        WR, XR, QA = 32, 96, 160
        seq = self.seq or {0: "zbx", 1: "zpbx", 2: "zbpx"}[self.p2early]
        self.seq = seq
        self.p2early = "p" in seq
        A("@@BEGIN_HHEAD")
        A(f"""
        {"s_setprio %d" % self.hprio if self.hprio else ""}
        v_mov_b32 v8, -1
        v_mov_b32 v9, -1
        v_mov_b32 v10, -1
        v_mov_b32 v11, -1
        v_mov_b32 v5, 0
        ds_write_b128 v3, v[8:11] offset:{LDS_Q}
        ds_write_b128 v5, v[8:11] offset:{LDS_FLAG}
        ds_write_b128 v5, v[8:11] offset:{LDS_WF}
        s_mul_i32 s52, s54, {CS}
        s_add_u32 s52, s52, {WS_CNT}
        v_lshrrev_b32 v6, 4, v1
        v_and_b32 v14, 3, v1
        v_lshlrev_b32 v4, 10, v14
        v_lshl_add_u32 v4, v6, 4, v4
        s_lshl_b32 s35, s53, 8
        v_add_u32 v4, s35, v4
        v_and_b32 v7, 8, v1
        v_lshl_add_u32 v7, v7, {3 if self.rk == 256 else 2}, v1
        v_lshl_add_u32 v7, v7, 2, s52
        {P2ADDR if self.p2early else ""}
        {P1ADDR if "q" in seq else ""}
        s_waitcnt lgkmcnt(0)
        """)
        after = None
        for tok in seq:
            n = 0
            if tok == "z":
                A(f"""
                s_cmp_lg_u32 s55, 0
                s_cbranch_scc1 L_noclear
                ; one workgroup per group zeroes the group's counters
                s_mov_b64 exec, {0xff03 if self.ms else 3:#x}
                global_store_dword v7, v5, s[18:19] sc1
                s_mov_b64 exec, -1
                L_noclear:
                """)
                after = 0; continue
            if tok == "b": A("s_barrier")
            if tok == "p": A("; empty this workgroup's output partial slot\n" + P2CLR); n = 1
            if tok == "q": A(P1CLR); n = 2
            if tok == "x":
                for t in range(4):
                    A(f"global_load_dwordx4 v[{XR+4*t}:{XR+4*t+3}], v4, s[4:5] offset:{64*t}")
                n = 4
            if after is not None: after += n
        self.zwait = after + 1
        self.xwait = 1 + sum({"p": 1, "q": 2, "z": 0}.get(t, 0) for t in seq[seq.index("x"):])
        self.jit(5)
        A("s_branch L_helper1\n@@END\n@@BEGIN_HFRONT")
        A(f"""
        L_helper1:
        ; pull a share of the kernel's code into this die's L2
        s_getpc_b64 s[36:37]
        L_pc:
        s_sub_u32 s36, s36, L_pc-{NAME}
        s_subb_u32 s37, s37, 0
        v_lshl_add_u32 v4, v1, 5, s21
        v_lshlrev_b32 v4, 7, v4
        v_min_u32 v4, L_code_end-{NAME}-4, v4
        s_mov_b64 exec, {(1 << self.cpl) - 1}
        global_load_dword v25, v4, s[36:37]
        s_mov_b64 exec, -1
        s_lshl_b32 s35, s22, 5
        v_lshlrev_b32 v22, 5, v1
        s_cmp_lg_u32 s55, 0
        s_cbranch_scc1 L_nosig
        s_add_u32 s46, s16, s35
        s_addc_u32 s47, s17, 0
        s_mov_b32 s48, 1
        s_waitcnt vmcnt({self.zwait})
        s_atomic_add s48, s[46:47], 0x0
        L_nosig:
        v_and_b32 v7, 15, v1
        v_lshrrev_b32 v13, 2, v7
        ; wo rows: (lane>>3)*1024 + (lane&7)*16
        v_lshrrev_b32 v2, 3, v1
        v_and_b32 v4, 7, v1
        v_lshlrev_b32 v4, 4, v4
        v_lshl_add_u32 v2, v2, 10, v4
        s_mul_i32 s41, s22, {CS}
        s_add_u32 s41, s41, {WS_CNT}
        v_mul_u32_u24 v30, {8*CS}, v1
        v_add_u32 v30, s41, v30
        v_lshlrev_b32 v15, 16, v14
        v_lshl_add_u32 v15, v13, 6, v15
        v_lshl_add_u32 v15, v6, 4, v15
        s_lshl_b32 s35, s22, 13
        s_lshl_b32 s41, s21, 8
        s_add_u32 s35, s35, s41
        v_add_u32 v15, s35, v15
        v_lshlrev_b32 v23, 5, v14
        v_lshl_add_u32 v23, v13, 9, v23
        v_lshl_add_u32 v23, v6, 7, v23
        s_lshl_b32 s35, s54, 13
        v_add_u32 v23, s35, v23
        v_add_u32 v29, 0x1000, v23
        v_lshl_add_u32 v13, v6, 3, v13
        v_lshlrev_b32 v13, 7, v13
        v_lshl_add_u32 v13, v14, 3, v13
        {"" if self.seq and "q" in self.seq else P1ADDR}
        {"" if self.p2early else P2ADDR}
        s_mov_b32 s49, 0
        L_waitw:
        ds_read_b128 v[16:19], v5 offset:{LDS_WF}
        s_add_u32 s49, s49, 1
        s_waitcnt lgkmcnt(0)
        v_max3_u32 v16, v16, v17, v18
        v_max_u32 v16, v16, v19
        v_cmp_eq_u32 vcc, -1, v16
        s_cbranch_vccz L_havew
        {"s_sleep %d" % self.wsleep if self.wsleep else ""}
        s_cmp_lt_u32 s49, {SPIN_MAX * 80}
        s_cbranch_scc1 L_waitw
        L_havew:
        {"" if self.lateflag else "s_mov_b64 exec, 0xff"}
        {"" if self.lateflag else "global_load_dword v24, v22, s[16:17] sc1"}
        {"" if self.lateflag else "s_mov_b64 exec, -1"}
        s_waitcnt vmcnt({self.xwait + (0 if self.lateflag else 1)})
        """)
        self.stamp(1)
        def rd(k):
            t, nt = k // 4, k % 4
            r = WR + 4 * k
            A(f"ds_read_b64_tr_b16 v[{r}:{r+1}], v13 offset:{LDS_W + t*4096 + nt*32}")
            A(f"ds_read_b64_tr_b16 v[{r+2}:{r+3}], v13 offset:{LDS_W + t*4096 + nt*32 + 512}")
        for k in range(6): rd(k)
        for k in range(16):
            t, nt = k // 4, k % 4
            A(f"s_waitcnt lgkmcnt({2*min(5, 15-k)})")
            c = QA + 4 * nt
            A(f"v_mfma_f32_16x16x32_bf16 v[{c}:{c+3}], v[{WR+4*k}:{WR+4*k+3}], v[{XR+4*t}:{XR+4*t+3}], {'0' if t == 0 else f'v[{c}:{c+3}]'}")
            if k + 6 < 16: rd(k + 6)
        A("s_nop 5")
        for nt in range(1, 4):
            for r in range(4):
                A(f"v_mov_b32_dpp v{QA+r}, v{QA+4*nt+r} quad_perm:[0,1,2,3] row_mask:0xf bank_mask:{1<<nt:#x}")
        self.jit(1)
        A(f"global_store_dwordx4 v15, v[{QA}:{QA+3}], s[18:19]")
        if self.cleanq: A("v_mov_b32 v176, v15")
        self.stamp(2)
        A(f"""
        {"" if self.p2early else P2CLR}
        {"" if "q" in seq else P1CLR}
        {WOSETUP if self.wopre else ""}
        """)
        for i in range(self.wopre):
            A(f"""
            s_waitcnt vmcnt(0)
            buffer_load_dwordx4 v2, s[24:27], s33 offen {wpol} lds
            s_add_u32 m0, m0, 0x400
            s_add_u32 s33, s33, 0x2000
            """)
        A(f"""
        {"s_waitcnt vmcnt(0)" if self.wopre else ""}
        s_mov_b64 exec, 0xff
        ; report the stores done, and the die this workgroup runs on
        s_getreg_b32 s59, hwreg(HW_REG_XCC_ID, 0, 3)
        s_lshl_b32 s59, s59, 2
        s_lshl_b32 s48, 1, s59
        s_add_u32 s46, s18, s52
        s_addc_u32 s47, s19, 0
        s_mov_b32 s49, 0
        s_branch {"L_pollflag1" if self.lateflag else "L_chkflag"}
        L_pollflag:
        s_sleep {self.fsleep}
        L_pollflag1:
        global_load_dword v24, v22, s[16:17] sc1
        L_chkflag:
        s_add_u32 s49, s49, 1
        s_waitcnt vmcnt(0)
        v_cmp_gt_u32 vcc, 4, v24
        s_cbranch_vccz L_gotflag
        s_cmp_lt_u32 s49, {SPIN_MAX}
        s_cbranch_scc1 L_pollflag
        L_gotflag:
        s_atomic_add s48, s[46:47], 0x0
        s_mov_b64 exec, -1
        {"" if self.wopre else WOSETUP}
        """)
        for i in range(self.wofirst):
            A(f"""
            buffer_load_dwordx4 v2, s[24:27], s33 offen {wpol} lds
            s_add_u32 m0, m0, 0x400
            s_add_u32 s33, s33, 0x2000
            s_waitcnt vmcnt(0)
            """)
        A(f"""
        s_mov_b64 exec, 15
        s_mov_b32 s49, 0
        s_branch L_pollq1
        L_pollq:
        s_sleep {self.csleep}
        L_pollq1:
        global_load_dword v24, v30, s[18:19] sc1
        s_add_u32 s49, s49, 1
        s_waitcnt vmcnt(0)
        """)
        self.nibble_sum(25, 24, 26)
        A(f"""
        v_cmp_ne_u32 vcc, 8, v25
        s_cbranch_vccz L_gotq
        s_cmp_lt_u32 s49, {SPIN_MAX}
        s_cbranch_scc1 L_pollq
        L_gotq:
        ; near = all 32 workgroups of this kv head run on this die: its L2 already holds what they stored
        s_waitcnt lgkmcnt(0)
        s_lshl_b32 s48, 8, s59
        v_cmp_ne_u32 vcc, s48, v24
        s_mov_b32 s59, 1
        s_mov_b64 exec, -1
        {"s_cbranch_vccz L_near" if not self.forcefar else ""}
        s_mov_b32 s59, 0
        global_store_dwordx4 v15, v[{QA}:{QA+3}], s[18:19] sc1
        global_store_dwordx4 v20, v[8:11], s[18:19] sc1
        s_mov_b64 exec, 0xff
        global_store_dwordx4 v21, v[8:11], s[18:19] sc1
        s_mov_b64 exec, 15
        s_mov_b32 s48, 1
        s_waitcnt vmcnt(0)
        s_atomic_add s48, s[46:47], 0x4
        L_pollq2:
        s_sleep 32
        global_load_dword v24, v30, s[18:19] offset:4 sc1
        s_add_u32 s49, s49, 1
        s_waitcnt vmcnt(0)
        v_cmp_ne_u32 vcc, 8, v24
        s_cbranch_vccz L_gotq2
        s_cmp_lt_u32 s49, {SPIN_MAX}
        s_cbranch_scc1 L_pollq2
        L_gotq2:
        s_mov_b64 exec, -1
        L_near:
        """)
        for kq in range(4):
            for e in range(2):
                r = WR + 8 * kq + 4 * e
                A(f"global_load_dwordx4 v[{r}:{r+3}], v{23 if kq < 2 else 29}, s[18:19] offset:{(kq % 2) * 2048 + 16 * e} sc1")
        A("s_waitcnt vmcnt(4)")
        for j in range(8): A(f"v_add_f32 v{WR+j}, v{WR+j}, v{WR+8+j}")
        A("s_waitcnt vmcnt(0)")
        for j in range(8): A(f"v_add_f32 v{WR+16+j}, v{WR+16+j}, v{WR+24+j}")
        for j in range(8): A(f"v_add_f32 v{WR+j}, v{WR+j}, v{WR+16+j}")
        for j in range(4): A(f"v_cvt_pk_bf16_f32 v{24+j}, v{WR+2*j}, v{WR+2*j+1}")
        for j in range(4): A(f"v_min_u32 v{24+j}, -2, v{24+j}")
        A(f"ds_write_b128 v3, v[24:27] offset:{LDS_Q}")
        self.stamp(3)
        if self.stamps: A("s_mov_b32 s57, s49")
        A("s_branch L_helper2\n@@END\n@@BEGIN_HMID")
        if self.align is True: A(".p2align 12")
        A("L_helper2:")
        self.jit(4)
        self.stamp(4)
        A(f"""
        L_wo:
        s_waitcnt vmcnt({self.wopace})
        buffer_load_dwordx4 v2, s[24:27], s33 offen {wpol} lds
        s_add_u32 m0, m0, 0x400
        s_add_u32 s33, s33, 0x2000
        s_cmp_lt_u32 s33, {(16 - self.wol - self.wos) * 0x2000}
        s_cbranch_scc1 L_wo
        ; wait for all first reports: every output partial slot is empty
        v_mul_u32_u24 v22, {CS}, v1
        v_add_u32 v22, {WS_CNT}, v22
        s_mov_b32 s49, 0
        s_mov_b32 exec_hi, 0
        L_pollall:
        global_load_dword v24, v22, s[18:19] sc1
        s_add_u32 s49, s49, 1
        s_waitcnt vmcnt(0)
        """)
        self.nibble_sum(25, 24, 26)
        A(f"""
        v_cmp_ne_u32 vcc, 8, v25
        s_cbranch_vccz L_gotall
        s_sleep 32
        s_cmp_lt_u32 s49, {SPIN_MAX}
        s_cbranch_scc1 L_pollall
        L_gotall:
        s_mov_b64 exec, -1
        v_mov_b32 v25, s59
        ds_write_b32 v5, v25 offset:{LDS_FLAG+4}
        s_cmp_eq_u32 s39, s22
        s_cselect_b32 s59, s59, 0
        s_and_b32 s41, s38, 3
        v_lshrrev_b32 v15, 2, v7
        v_lshlrev_b32 v15, 16, v15
        v_lshl_add_u32 v15, v14, 10, v15
        v_lshl_add_u32 v15, v6, 4, v15
        s_lshl_b32 s35, s22, 13
        s_lshl_b32 s50, s41, 8
        s_add_u32 s35, s35, s50
        s_add_u32 s35, s35, {WS_P1}
        v_add_u32 v15, s35, v15
        v_add_u32 v16, 0x1000, v15
        v_and_b32 v17, 7, v1
        v_lshlrev_b32 v17, 7, v17
        v_lshl_add_u32 v17, v6, 13, v17
        s_lshl_b32 s35, s22, 10
        s_lshl_b32 s50, s41, 3
        s_add_u32 s35, s35, s50
        s_add_u32 s35, s35, {WS_ML}
        v_add_u32 v17, s35, v17
        v_lshrrev_b32 v18, 1, v1
        v_lshlrev_b32 v18, 13, v18
        v_and_b32 v19, 1, v1
        v_lshl_add_u32 v18, v19, 4, v18
        s_lshl_b32 s35, s22, 10
        s_lshl_b32 s50, s21, 5
        s_add_u32 s35, s35, s50
        s_add_u32 s35, s35, {WS_P2}
        v_add_u32 v18, s35, v18
        ; output dword: (a>>3)*1024 + x*128 + nt(row)*32 + (a&7)*4 ; nt(row) = 0,2,1,3
        v_and_b32 v19, 1, v6
        v_lshlrev_b32 v19, 6, v19
        v_lshrrev_b32 v20, 1, v6
        v_lshl_add_u32 v19, v20, 5, v19
        s_lshr_b32 s35, s21, 3
        s_lshl_b32 s35, s35, 10
        s_lshl_b32 s50, s22, 7
        s_add_u32 s35, s35, s50
        s_lshl_b32 s50, s55, 2
        s_add_u32 s35, s35, s50
        v_add_u32 v19, s35, v19
        """)
        BR, AR, CR = 32, 96, 128
        for t in range(4 - (self.wol + self.wos) // 4):
            for nt in range(4): rd(4 * t + nt)
            A("s_waitcnt lgkmcnt(0)")
        A("s_mov_b32 s49, 0\ns_waitcnt lgkmcnt(0)\ns_branch L_helper3\n@@END\n@@BEGIN_HTAIL")
        def poll1_loads():
            A("global_load_dwordx2 v[20:21], v17, s[18:19] sc1")
            for u in range(2):
                for t in range(4):
                    r = AR + 16 * u + 4 * t
                    A(f"global_load_dwordx4 v[{r}:{r+3}], v{15+u}, s[18:19] offset:{64*t} sc1")
        A("L_helper4:")
        if self.pads: A("s_mov_b64 exec, 0\ns_branch L_pad1\nL_padret:\ns_mov_b64 exec, -1")
        def late_wo():
            for i in range(self.wol):
                if self.wpace is not None and i > self.wpace: A(f"s_waitcnt vmcnt({self.wpace})")
                A(f"buffer_load_dwordx4 v2, s[24:27], s33 offen {wpol} lds\ns_add_u32 m0, m0, 0x400\ns_add_u32 s33, s33, 0x2000")
        def late_rd():
            A("s_waitcnt vmcnt(0)")
            for j, k in enumerate(range(16 - self.wol, 16)):
                if j in (6, 9): A("s_waitcnt lgkmcnt(6)")
                rd(k)
        if self.wtrig:
            A(f"""
            L_waitend:
            s_sleep 1
            ds_read_b32 v24, v5 offset:{LDS_FLAG}
            s_add_u32 s49, s49, 1
            s_waitcnt lgkmcnt(0)
            v_cmp_eq_u32 vcc, -1, v24
            s_cbranch_vccz L_nearend
            s_cmp_lt_u32 s49, {SPIN_MAX * 64}
            s_cbranch_scc1 L_waitend
            L_nearend:
            s_mov_b32 s49, 0
            """)
            late_wo()
            if self.wwait: late_rd()
        A("s_barrier")
        if self.nopoll:
            A("s_barrier")
            for i in range(5, 10): self.stamp(i)
            self.stamp_out(10)
            A("s_endpgm")
        poll1_loads()
        if self.wol and not self.wtrig:
            A("; the rest of wo comes in while the last keys are being finished")
            late_wo()
        A("s_barrier")
        self.stamp(5)
        if self.wol and not self.wwait: late_rd()
        if self.wos:
            A("s_barrier\ns_waitcnt vmcnt(0)\nv_max_u32 v22, v20, v21")
            for k in range(8):
                r = AR + 4 * k
                A(f"v_max3_u32 v22, v22, v{r}, v{r+1}\nv_max3_u32 v22, v22, v{r+2}, v{r+3}")
            A("v_cmp_eq_u32 vcc, -1, v22\ns_and_b64 exec, exec, vcc\ns_mov_b64 s[50:51], exec\ns_cbranch_scc0 L_nopoll")
            poll1_loads()
            A("L_nopoll:\ns_mov_b64 exec, -1")
            for j, k in enumerate(range(16 - self.wos, 16)):
                if j in (6, 9): A("s_waitcnt lgkmcnt(6)")
                rd(k)
            A("s_and_b64 exec, exec, s[50:51]\ns_cbranch_scc0 L_got1")
        if self.incr: self.tail_incr(AR, BR, CR, poll1_loads)
        else:
            A("s_branch L_chk1\nL_poll1:")
            if self.t1: A(f"s_sleep {self.t1}")
            poll1_loads()
            A("L_chk1:\ns_add_u32 s49, s49, 1\ns_waitcnt vmcnt(8)\nv_max_u32 v22, v20, v21")
            for k in range(8):
                r = AR + 4 * k
                A(f"s_waitcnt vmcnt({7-k})")
                A(f"v_max3_u32 v22, v22, v{r}, v{r+1}")
                A(f"v_max3_u32 v22, v22, v{r+2}, v{r+3}")
            A(f"""
            v_cmp_eq_u32 vcc, -1, v22
            s_cmp_ge_u32 s49, {SPIN_MAX * 20}
            s_cbranch_scc1 L_got1
            s_and_b64 exec, exec, vcc
            s_cbranch_scc1 L_poll1
            L_got1:
            s_mov_b64 exec, -1
            {"s_waitcnt lgkmcnt(0)" if self.wol or self.wos else ""}
            """)
            self.pad()
            self.stamp(6)
            wl = [
                "v_max_f32_dpp v22, v20, v20 row_ror:1 row_mask:0xf bank_mask:0xf",
                "v_max_f32_dpp v22, v22, v22 row_ror:2 row_mask:0xf bank_mask:0xf",
                "v_max_f32_dpp v22, v22, v22 row_ror:4 row_mask:0xf bank_mask:0xf",
                "v_sub_f32 v22, v20, v22",
                "v_exp_f32 v22, v22",
                "v_mul_f32 v23, v22, v21",
                "v_add_f32_dpp v23, v23, v23 row_ror:1 row_mask:0xf bank_mask:0xf",
                "v_add_f32_dpp v23, v23, v23 row_ror:2 row_mask:0xf bank_mask:0xf",
                "v_add_f32_dpp v23, v23, v23 row_ror:4 row_mask:0xf bank_mask:0xf",
                "v_rcp_f32 v23, v23",
                "v_mul_f32 v22, v22, v23",
            ]
            def fm(u, r, nt):
                c = CR + 16 * u + 4 * nt + r
                op = "v_mul_f32_dpp" if (u == 0 and r == 0) else "v_fmac_f32_dpp"
                return f"{op} v{24+nt}, v22, v{c} row_newbcast:{4*u+r} row_mask:0xf bank_mask:0xf"
            f0 = [fm(0, r, nt) for r in range(4) for nt in range(4)]
            k = 0
            for u in range(2):
                for t in range(4):
                    for nt in range(4):
                        a, b, c = AR + 16 * u + 4 * t, BR + 16 * t + 4 * nt, CR + 16 * u + 4 * nt
                        A(f"v_mfma_f32_16x16x32_bf16 v[{c}:{c+3}], v[{a}:{a+3}], v[{b}:{b+3}], {'0' if t == 0 else f'v[{c}:{c+3}]'}")
                        k += 1
                        if wl: A(wl.pop(0) + "\ns_nop 0")
                        elif k >= 24 and f0:
                            A(f0.pop(0)); A(f0.pop(0))
            assert not wl
            for x in f0: A(x)
            A("s_nop 4")
            for r in range(4):
                for nt in range(4): A(fm(1, r, nt))
        self.jit(3)
        A("s_cmp_eq_u32 s59, 1\ns_mov_b32 s49, 0")
        for nt in range(4): A(f"v_min_u32 v{24+nt}, -2, v{24+nt}")
        A(f"""
        s_cbranch_scc1 L_p2_near
        global_store_dwordx4 v12, v[24:27], s[18:19] sc1
        s_branch L_p2_done
        L_p2_near:
        global_store_dwordx4 v12, v[24:27], s[18:19]
        L_p2_done:
        {"s_barrier" if self.clean else ""}
        {f"global_store_dwordx4 v176, v[{QA}:{QA+3}], s[18:19] sc1" if self.cleanq else ""}
        """)
        self.stamp(7)
        REDO = f"""s_cmp_lg_u32 s49, {self.nre}
            s_cbranch_scc1 L_poll2a
            s_cmp_lg_u32 s59, 1
            s_cbranch_scc1 L_poll2a
            s_mov_b64 s[40:41], exec
            s_mov_b64 exec, -1
            global_store_dwordx4 v12, v[24:27], s[18:19] sc1
            s_mov_b64 exec, s[40:41]
            s_mov_b32 s59, 0"""
        REDO2 = """s_cmp_lg_u32 s59, 1
            s_cbranch_scc1 L_sum2
            global_store_dwordx4 v12, v[24:27], s[18:19] sc1
            L_sum2:"""
        if self.p2depth == 1:
            A(f"""
            {"s_branch L_poll2a" if self.t2 or self.clean else ""}
            L_poll2:
            {"s_sleep %d" % self.t2 if self.t2 else ""}
            {REDO if self.clean else ""}
            L_poll2a:
            global_load_dwordx4 v[28:31], v18, s[18:19] sc1
            s_add_u32 s49, s49, 1
            s_waitcnt vmcnt(0)
            v_max3_u32 v22, v28, v29, v30
            v_max_u32 v22, v22, v31
            v_cmp_eq_u32 vcc, -1, v22
            s_cmp_ge_u32 s49, {SPIN_MAX * 20}
            s_cbranch_scc1 L_got2
            s_and_b64 exec, exec, vcc
            s_cbranch_scc1 L_poll2
            L_got2:
            s_mov_b64 exec, -1
            {REDO2 if self.clean else ""}
            """)
        else:
            A(f"""
            global_load_dwordx4 v[28:31], v18, s[18:19] sc1
            L_poll2:
            global_load_dwordx4 v[32:35], v18, s[18:19] sc1
            s_add_u32 s49, s49, 1
            s_waitcnt vmcnt(1)
            v_max3_u32 v22, v28, v29, v30
            v_max_u32 v22, v22, v31
            v_cmp_eq_u32 vcc, -1, v22
            s_cbranch_vccz L_got2
            global_load_dwordx4 v[28:31], v18, s[18:19] sc1
            s_waitcnt vmcnt(1)
            v_max3_u32 v22, v32, v33, v34
            v_max_u32 v22, v22, v35
            v_cmp_eq_u32 vcc, -1, v22
            s_cmp_lt_u32 s49, {SPIN_MAX}
            s_cbranch_vccz L_got2b
            s_cbranch_scc1 L_poll2
            L_got2b:
            v_mov_b32 v36, v32
            v_mov_b32 v37, v33
            v_mov_b32 v38, v34
            v_mov_b32 v39, v35
            s_branch L_sum2
            L_got2:
            v_mov_b32 v36, v28
            v_mov_b32 v37, v29
            v_mov_b32 v38, v30
            v_mov_b32 v39, v31
            L_sum2:
            s_nop 0
            """)
        self.pad()
        self.stamp(8)
        z = 28 if self.p2depth == 1 else 36
        A(f"""
        v_permlane32_swap_b32 v{z}, v{z+1}
        v_permlane32_swap_b32 v{z+2}, v{z+3}
        s_nop 1
        v_add_f32 v{z}, v{z}, v{z+1}
        v_add_f32 v{z+2}, v{z+2}, v{z+3}
        s_nop 1
        v_permlane16_swap_b32 v{z}, v{z+2}
        s_nop 1
        v_add_f32 v{z}, v{z}, v{z+2}
        s_nop 1
        v_add_f32_dpp v{z}, v{z}, v{z} row_ror:2 row_mask:0xf bank_mask:0xf
        s_nop 1
        v_add_f32_dpp v{z}, v{z}, v{z} row_ror:4 row_mask:0xf bank_mask:0xf
        s_nop 1
        v_add_f32_dpp v{z}, v{z}, v{z} row_ror:8 row_mask:0xf bank_mask:0xf
        s_nop 1
        v_mov_b32_dpp v{z+1}, v{z} quad_perm:[1,1,1,1] row_mask:0xf bank_mask:0xf
        s_mov_b32 exec_lo, 0x00010001
        s_mov_b32 exec_hi, 0x00010001
        v_cvt_pk_bf16_f32 v{z}, v{z}, v{z+1}
        global_store_dword v19, v{z}, s[14:15] {"sc1" if self.clean else ""}
        """)
        self.stamp(9)
        self.stamp_out(10)
        A("L_end:\ns_endpgm")
        if self.pads: A(f"L_pad{self.npad+1}:\ns_branch L_padret")
        A("@@END")

    def tail_incr(self, AR, BR, CR, poll1_loads):
        A = self.A
        def mf(u, t, nt):
            a, b, c = AR + 16 * u + 4 * t, BR + 16 * t + 4 * nt, CR + 16 * u + 4 * nt
            return f"v_mfma_f32_16x16x32_bf16 v[{c}:{c+3}], v[{a}:{a+3}], v[{b}:{b+3}], {'0' if t == 0 else f'v[{c}:{c+3}]'}"
        block = lambda u: [mf(u, t, nt) for t in range(4) for nt in range(4)]
        SUM = (24, 160)
        def fm(u, r, nt):
            op = "v_mul_f32_dpp" if r == 0 else "v_fmac_f32_dpp"
            return f"{op} v{SUM[u]+nt}, v22, v{CR + 16*u + 4*nt + r} row_newbcast:{4*u+r} row_mask:0xf bank_mask:0xf"
        fms = lambda u: [fm(u, r, nt) for r in range(4) for nt in range(4)]
        WL = [
            "v_max_f32_dpp v22, v20, v20 row_ror:1 row_mask:0xf bank_mask:0xf",
            "v_max_f32_dpp v22, v22, v22 row_ror:2 row_mask:0xf bank_mask:0xf",
            "v_max_f32_dpp v22, v22, v22 row_ror:4 row_mask:0xf bank_mask:0xf",
            "v_sub_f32 v22, v20, v22",
            "v_exp_f32 v22, v22",
            "v_mul_f32 v23, v22, v21",
            "v_add_f32_dpp v23, v23, v23 row_ror:1 row_mask:0xf bank_mask:0xf",
            "v_add_f32_dpp v23, v23, v23 row_ror:2 row_mask:0xf bank_mask:0xf",
            "v_add_f32_dpp v23, v23, v23 row_ror:4 row_mask:0xf bank_mask:0xf",
            "v_rcp_f32 v23, v23",
            "v_mul_f32 v22, v22, v23",
        ]
        A("s_mov_b32 s48, 0")
        A("L_chk1:\ns_add_u32 s49, s49, 1\ns_waitcnt vmcnt(8)\nv_max_u32 v31, v20, v21")
        for k in range(8):
            r, d = AR + 4 * k, 22 + k // 4
            A(f"s_waitcnt vmcnt({7-k})")
            A(f"v_max_u32 v{d}, v{r}, v{r+1}" if k % 4 == 0 else f"v_max3_u32 v{d}, v{d}, v{r}, v{r+1}")
            A(f"v_max3_u32 v{d}, v{d}, v{r+2}, v{r+3}")
        A(f"""
        v_cmp_eq_u32 vcc, -1, v31
        v_cmp_eq_u32 s[40:41], -1, v22
        v_cmp_eq_u32 s[50:51], -1, v23
        s_cmp_ge_u32 s49, {SPIN_MAX * 20}
        s_cbranch_scc1 L_got1
        s_or_b64 vcc, vcc, s[40:41]
        s_or_b64 exec, vcc, s[50:51]
        s_cbranch_scc0 L_got1
        """)
        poll1_loads()
        A("""
        ; a half whose sixteen rows are all there is multiplied while the rest is awaited
        s_cmp_lg_u32 s48, 0
        s_cbranch_scc1 L_chk1
        s_mov_b64 s[36:37], exec
        s_cmp_eq_u64 s[40:41], 0
        s_cbranch_scc1 L_half0
        s_cmp_eq_u64 s[50:51], 0
        s_cbranch_scc0 L_chk1
        s_mov_b64 exec, -1
        s_mov_b32 s48, 2
        s_waitcnt lgkmcnt(0)
        """)
        for x in block(1): A(x)
        A("s_mov_b64 exec, s[36:37]\ns_branch L_chk1\nL_half0:\ns_mov_b64 exec, -1\ns_mov_b32 s48, 1\ns_waitcnt lgkmcnt(0)")
        for x in block(0): A(x)
        A("s_mov_b64 exec, s[36:37]\ns_branch L_chk1")
        A("L_got1:\ns_mov_b64 exec, -1\ns_waitcnt lgkmcnt(0)")
        self.pad()
        self.stamp(6)
        def finish(last, other, label):
            wl, fo = list(WL), fms(other)
            for x in block(last):
                A(x)
                if wl: A(wl.pop(0) + "\ns_nop 0")
                else: A(fo.pop(0)); A(fo.pop(0))
            for x in fo: A(x)
            A("s_nop 1")
            for x in fms(last): A(x)
        A("s_cmp_eq_u32 s48, 2\ns_cbranch_scc1 L_fin0\ns_cmp_eq_u32 s48, 1\ns_cbranch_scc1 L_fin1")
        for x in block(0): A(x)
        A("L_fin1:")
        self.pad()
        finish(1, 0, "a")
        A("s_branch L_fin\nL_fin0:")
        self.pad()
        finish(0, 1, "b")
        A("L_fin:")
        self.pad()
        for nt in range(4): A(f"v_add_f32 v{24+nt}, v{24+nt}, v{160+nt}")

    def build(self):
        A = self.A
        self.L.append(HEADER.rstrip("\n"))
        self.L.append(f"; @launch grid=(256,1,1) block=(320,1,1) lds={LDS_SIZE}")
        A('.amdgcn_target "amdgcn-amd-amdhsa--gfx950"')
        A(".text")
        if self.align:
            self.L.append("; unreached padding: puts the entry at the start of a 4 KiB page (instruction prefetch stops at page ends)")
            A(".p2align 12\n.fill 832, 4, 0xbf810000")
        A(f".globl {NAME}\n.p2align 8\n.type {NAME},@function\n{NAME}:")
        A("""
        s_cmp_ge_u32 s2, 256
        s_cbranch_scc1 L_end
        s_load_dwordx16 s[4:19], s[0:1], 0
        """)
        self.stamp(0)
        self.jit(0)
        A("""
        v_lshrrev_b32 v2, 6, v0
        v_and_b32 v1, 63, v0
        s_lshr_b32 s21, s2, 3
        v_readfirstlane_b32 s20, v2
        s_and_b32 s22, s2, 7
        v_lshlrev_b32 v3, 4, v1
        s_mov_b32 s27, 0x20000
        s_mov_b32 s31, 0x20000
        s_and_b32 s54, s21, 24
        s_add_u32 s54, s54, s22
        s_and_b32 s55, s21, 7
        s_lshl_b32 s56, s54, 3
        s_add_u32 s56, s56, s55
        s_lshr_b32 s53, s21, 3
        s_lshl_b32 s34, s53, 20
        s_lshl_b32 s35, s22, 10
        s_add_u32 s34, s34, s35
        s_lshl_b32 s35, s55, 7
        s_add_u32 s34, s34, s35
        s_cmp_lg_u32 s20, 0
        s_cbranch_scc1 L_stream
        """)
        head = self.L
        self.L = []; self.streamer(); st = self.L
        self.L = []; self.helper(); hl = self.L
        parts, cur = {}, None
        for line in hl:
            t = line.strip()
            if t.startswith("@@BEGIN_"): cur = t[8:]; parts[cur] = []
            elif t == "@@END": cur = None
            else: parts[cur].append(line)
        self.L = head
        for line in st:
            t = line.strip()
            if t.startswith("@@"): self.L += parts.pop(t[2:])
            else: self.L.append(line)
        self.L += parts.pop("HTAIL")
        assert not parts
        A("L_code_end:")
        nv = max(self.nv_stream, 180)
        A(f""".section .rodata,"a"
.p2align 6
.amdhsa_kernel {NAME}
  .amdhsa_next_free_vgpr {nv}
  .amdhsa_next_free_sgpr 96
  .amdhsa_accum_offset {(nv + 3) // 4 * 4}
  .amdhsa_group_segment_fixed_size 0
  .amdhsa_kernarg_size 64
  .amdhsa_user_sgpr_count 2
  .amdhsa_user_sgpr_kernarg_segment_ptr 1
  .amdhsa_system_sgpr_workgroup_id_x 1
  .amdhsa_float_denorm_mode_32 3
.end_amdhsa_kernel""")
        txt = "\n".join(self.L) + "\n"
        def rep(a, b, n=1):
            nonlocal txt
            assert txt.count(a) >= 1, a
            txt = txt.replace(a, b, n)
        if "code" in self.abl: rep("global_load_dword v25, v4, s[36:37]", "global_load_dword v25, v5, s[4:5]")
        if "p2clr" in self.abl: rep("global_store_dwordx4 v12, v[8:11], s[18:19] sc1", "s_nop 0")
        if "p2plain" in self.abl: rep("global_store_dwordx4 v12, v[8:11], s[18:19] sc1", "global_store_dwordx4 v12, v[8:11], s[18:19]")
        if "p1clr" in self.abl:
            rep("global_store_dwordx4 v20, v[8:11], s[18:19]\n", "s_nop 0\n"); rep("global_store_dwordx4 v21, v[8:11], s[18:19]\n", "s_nop 0\n")
        if "all" in self.abl: rep("global_load_dword v24, v22, s[18:19] sc1", "v_mov_b32 v24, 8")
        if "flag" in self.abl: rep("global_load_dword v24, v22, s[16:17] sc1", "v_mov_b32 v24, 4")
        if "qld" in self.abl:
            import re
            txt = re.sub(r"global_load_dwordx4 v\[(3[6-9]|[4-6]\d):\d+\], v(23|29), s\[18:19\] offset:\d+ sc1\n", "s_nop 0\n", txt)
        if "wo" in self.abl: rep("s_sub_u32 s26, 0x400000, s35", "s_mov_b32 s26, 0")
        if "wq" in self.abl: rep("s_sub_u32 s38, 0x400000, s34", "s_mov_b32 s38, 0")
        return txt


if __name__ == "__main__":
    out = sys.argv[1] if len(sys.argv) > 1 else "standalone__gqa_block_cached__decode.s"
    kw = eval("dict(" + (sys.argv[2] if len(sys.argv) > 2 else "") + ")")
    open(out, "w").write(Gen(**kw).build())
```
